```python
import torch

def _softmax(x, axis=-1):
    return torch.softmax(x, dim=axis)
def _gelu(x):
    return torch.nn.functional.gelu(x, approximate="tanh")
def _silu(x):
    return torch.nn.functional.silu(x)
def _sigmoid(x):
    return torch.sigmoid(x)
def _layernorm(x, axis=-1, eps=1e-5):
    m = x.mean(dim=axis, keepdim=True)
    v = x.var(dim=axis, keepdim=True, unbiased=False)
    return (x - m) / torch.sqrt(v + eps)
def _scatter_add(tgt, idx, src, axis=0):
    return tgt.clone().index_add_(axis, idx, src)
def _segment_sum(src, seg, n):
    out = torch.zeros((n,) + src.shape[1:], dtype=src.dtype)
    return out.index_add_(0, seg, src)
def _pad(x, pw):
    flat = tuple(v for pair in reversed(pw) for v in pair)
    return torch.nn.functional.pad(x, flat)

kernel_name = 'recurrent_scan__mha_block__swiglu_ffn__prompt'

def setup_inputs():

    _w = (lambda a: (lambda t: t.to(torch.bfloat16) if t.is_floating_point() else t)(torch.as_tensor(a)))
    def _A_setup():
        B, S, D, H = 1, 2048, 448, 16
        return {
            "x": _w((lambda *s: torch.randn(*s, dtype=torch.bfloat16) * 0.05)(B, S, D)),
            "wqkv": _w((lambda *s: torch.randn(*s, dtype=torch.bfloat16) * 0.05)(D, 3 * D)),
            "wo": _w((lambda *s: torch.randn(*s, dtype=torch.bfloat16) * 0.05)(D, D)),
        }
    _A_in = _A_setup()

    def _B_setup():
        B, S, D, F = 1, 2048, 448, 1792
        return {
            "x": _w((lambda *s: torch.randn(*s, dtype=torch.bfloat16) * 0.05)(B, S, D)),
            "w_gate": _w((lambda *s: torch.randn(*s, dtype=torch.bfloat16) * 0.05)(D, F)),
            "w_up": _w((lambda *s: torch.randn(*s, dtype=torch.bfloat16) * 0.05)(D, F)),
            "w_down": _w((lambda *s: torch.randn(*s, dtype=torch.bfloat16) * 0.05)(F, D)),
        }
    _B_in = _B_setup()

    return {
        "A_x": _A_in["x"],
        "A_wqkv": _A_in["wqkv"],
        "A_wo": _A_in["wo"],
        "B_x": _B_in["x"],
        "B_w_gate": _B_in["w_gate"],
        "B_w_up": _B_in["w_up"],
        "B_w_down": _B_in["w_down"],
    }

def reference(A_x, A_wqkv, A_wo, B_x, B_w_gate, B_w_up, B_w_down):
    def _A_ref(x, wqkv, wo):
        B, S, D = x.shape
        H = 16
        Dh = D // H
        qkv = (lambda x, *d: x.permute(*d))((x @ wqkv).reshape(B, S, 3, H, Dh), 2, 0, 3, 1, 4)
        q, k, v = qkv[0], qkv[1], qkv[2]
        scores = torch.einsum("bhqd,bhkd->bhqk", q, k) * (Dh ** -0.5)
        p = _softmax(scores, axis=-1)
        o = torch.einsum("bhqk,bhkd->bhqd", p, v)
        return (lambda x, *d: x.permute(*d))(o, 0, 2, 1, 3).reshape(B, S, D) @ wo

    def _B_ref(x, w_gate, w_up, w_down):
        g = _silu(x @ w_gate)
        u = x @ w_up
        return (g * u) @ w_down

    x = A_x
    xn = _layernorm(x, axis=-1)
    s = _A_ref(xn, A_wqkv, A_wo)
    g = _silu(_B_ref(xn, B_w_gate, B_w_up, B_w_down))
    return x + s * g
```

```python
import re

RNG = re.compile(r'^-?\|?([vas])\[(\d+):(\d+)\]\|?$')
ONE = re.compile(r'^-?\|?([vas])(\d+)\|?$')
TRANS = ('v_exp_f32', 'v_log_f32', 'v_rcp_f32', 'v_rsq_f32', 'v_sqrt_f32', 'v_sin_f32', 'v_cos_f32')

def regs_of(tok):
    tok = tok.strip()
    m = RNG.match(tok)
    if m: return [(m.group(1), i) for i in range(int(m.group(2)), int(m.group(3)) + 1)]
    m = ONE.match(tok)
    if m: return [(m.group(1), int(m.group(2)))]
    if tok == 'vcc': return [('s', 'vcc_lo'), ('s', 'vcc_hi')]
    if tok in ('vcc_lo', 'vcc_hi'): return [('s', tok)]
    if tok == 'exec': return [('s', 'exec_lo'), ('s', 'exec_hi')]
    if tok in ('exec_lo', 'exec_hi'): return [('s', tok)]
    if tok == 'm0': return [('s', 'm0')]
    return []

class Ins:
    __slots__ = ('text', 'op', 'kind', 'dst', 'src', 'srcC', 'tag', 'pre', 'meta')
    def __init__(self, text, tag=None, meta=None):
        self.text = text; self.tag = tag; self.pre = []; self.meta = meta or {}
        self.dst = []; self.src = []; self.srcC = []
        t = text.strip()
        if t.endswith(':') or t.startswith('.') or t.startswith(';') or t == '':
            self.op = t; self.kind = 'label' if t.endswith(':') else 'dir'; return
        sp = t.split(None, 1)
        op = sp[0]; self.op = op
        rest = sp[1] if len(sp) > 1 else ''
        ops = []; depth = 0; cur = ''
        for ch in rest:
            if ch == '[': depth += 1
            if ch == ']': depth -= 1
            if ch == ',' and depth == 0: ops.append(cur.strip()); cur = ''
            else: cur += ch
        if cur.strip(): ops.append(cur.strip())
        mods = ''
        if ops:
            last = ops[-1].split(None, 1)
            ops[-1] = last[0]
            mods = last[1] if len(last) > 1 else ''
        R = [regs_of(o) for o in ops]
        flat = lambda l: [r for x in l for r in x]
        if op.startswith('v_mfma'):
            self.kind = 'mfma'; self.dst = R[0]; self.src = flat(R[1:3]); self.srcC = R[3]
        elif op.startswith('v_'):
            self.kind = 'trans' if op.replace('_e32', '').replace('_e64', '') in TRANS else 'valu'
            if op.startswith('v_cmp'):
                self.dst = R[0]; self.src = flat(R[1:])
                if op.startswith('v_cmpx'): self.dst = self.dst + regs_of('exec')
            elif op.startswith(('v_permlane32_swap', 'v_permlane16_swap', 'v_swap')):
                self.dst = flat(R); self.src = flat(R)
            elif op.startswith(('v_add_co', 'v_sub_co', 'v_addc_co', 'v_subb_co')):
                self.dst = flat(R[:2]); self.src = flat(R[2:])
            else:
                self.dst = R[0]; self.src = flat(R[1:])
                if op.startswith('v_dot'): self.meta['ab'] = flat(R[1:3])
                if op.startswith(('v_fmac', 'v_dot2c', 'v_mac', 'v_writelane')) or 'dpp' in op or 'row_' in mods or 'quad_perm' in mods:
                    self.src = self.src + R[0]
        elif op.startswith('ds_'):
            self.kind = 'ds'
            if op.startswith(('ds_read', 'ds_bpermute', 'ds_permute', 'ds_swizzle')):
                self.dst = R[0]; self.src = flat(R[1:])
            else: self.src = flat(R)
        elif op.startswith(('buffer_', 'global_')):
            self.kind = 'vm'
            words = mods.split()
            if 'lds' in words or op.startswith('global_load_lds'):
                self.src = flat(R) + regs_of('m0'); self.meta['dma'] = True
            elif '_load' in op:
                self.dst = R[0]; self.src = flat(R[1:])
            elif '_atomic' in op:
                self.src = flat(R)
                if 'sc0' in words: self.dst = R[0]
            else:
                self.src = flat(R); self.meta['store'] = R[0] if op.startswith('buffer_') else R[1]
        elif op.startswith('s_'):
            if op in ('s_waitcnt', 's_nop', 's_barrier', 's_endpgm', 's_sleep', 's_setprio', 's_branch') or op.startswith('s_cbranch'):
                self.kind = 'sctl'
                if op.startswith('s_cbranch_vcc'): self.src = regs_of('vcc')
                if op.startswith('s_cbranch_exec'): self.src = regs_of('exec')
            elif op.startswith(('s_load', 's_memtime', 's_memrealtime', 's_buffer_load')):
                self.kind = 'smem'; self.dst = R[0]; self.src = flat(R[1:])
            elif op.startswith(('s_cmp', 's_bitcmp')):
                self.kind = 'salu'; self.src = flat(R); self.dst = [('c', 'scc')]
            else:
                self.kind = 'salu'; self.dst = R[0]; self.src = flat(R[1:])
                if 'saveexec' in op: self.dst = self.dst + regs_of('exec'); self.src = self.src + regs_of('exec')
                if op.startswith(('s_addk', 's_mulk', 's_bitset')): self.src = self.src + R[0]
                if op.startswith(('s_cselect', 's_addc', 's_subb', 's_cmov')): self.src = self.src + [('c', 'scc')]
        else:
            raise ValueError('unknown op: ' + text)

class Prog:
    def __init__(self):
        self.L = []
    def __call__(self, text, tag=None, **meta):
        for ln in text.split('\n'):
            ln = ln.strip()
            if ln: self.L.append(Ins(ln, tag, dict(meta)))
    def need(self, *toks):
        i = Ins('; need ' + ' '.join(toks)); i.kind = 'need'; i.src = [r for t in toks for r in regs_of(t)]
        self.L.append(i)
    def wait_tag(self, *tags, lgkm0=False):
        i = Ins('; wait_tag ' + ' '.join(tags)); i.kind = 'wtag'; i.meta['tags'] = tags; i.meta['lgkm0'] = lgkm0
        self.L.append(i)
    def mark(self, name):
        i = Ins('; ---- ' + name); i.kind = 'mark'; i.meta['name'] = name; self.L.append(i)
    def reset(self):
        i = Ins('; reset'); i.kind = 'reset'; self.L.append(i)

    def pass_waits(self):
        vm = []; lg = []
        out = []
        def emit_wait(v, l):
            nonlocal vm, lg
            parts = []
            if v is not None:
                v = min(v, 63); parts.append(f'vmcnt({v})'); vm = vm[len(vm) - v:] if v < len(vm) else vm
                if v == 0: vm = []
            if l is not None:
                l = min(l, 15); parts.append(f'lgkmcnt({l})'); lg = lg[len(lg) - l:] if l < len(lg) else lg
                if l == 0: lg = []
            if parts:
                out.append(Ins('s_waitcnt ' + ' '.join(parts)))
        for ins in self.L:
            k = ins.kind
            if k == 'reset':
                vm = []; lg = []; out.append(ins); continue
            if k == 'sctl' and ins.op == 's_waitcnt':
                m = re.search(r'vmcnt\((\d+)\)', ins.text)
                if m:
                    v = int(m.group(1)); vm = vm[len(vm) - v:] if 0 < v < len(vm) else ([] if v == 0 else vm)
                m = re.search(r'lgkmcnt\((\d+)\)', ins.text)
                if m:
                    l = int(m.group(1))
                    if l == 0: lg = []
                    elif not any(e['smem'] for e in lg): lg = lg[len(lg) - l:] if l < len(lg) else lg
                out.append(ins); continue
            nv = nl = None
            if k == 'wtag':
                for p, e in enumerate(vm):
                    if e['tag'] in ins.meta['tags']: nv = len(vm) - p - 1
                for p, e in enumerate(lg):
                    if e['tag'] in ins.meta['tags']: nl = len(lg) - p - 1
                if nl is not None and any(e['smem'] for e in lg): nl = 0
                if ins.meta['lgkm0'] and lg: nl = 0
            else:
                touch = set(ins.src) | set(ins.srcC) | set(ins.dst)
                if touch:
                    for p, e in enumerate(vm):
                        if e['dst'] & touch: nv = len(vm) - p - 1
                    for p, e in enumerate(lg):
                        if e['dst'] & touch: nl = len(lg) - p - 1
                    if nl is not None and any(e['smem'] for e in lg): nl = 0
            emit_wait(nv, nl)
            if k in ('need', 'wtag'): continue
            if k == 'vm':
                vm.append(dict(dst=set(ins.dst), tag=ins.tag))
                if len(vm) > 63: print('WARNING vm queue', len(vm), ins.text)
            if k == 'ds': lg.append(dict(dst=set(ins.dst), smem=False, tag=ins.tag))
            if k == 'smem': lg.append(dict(dst=set(ins.dst), smem=True, tag=ins.tag))
            out.append(ins)
        self.L = out

    def pass_nops(self, verbose=True):
        out = []; hist = []
        stats = {}; region = 'start'
        def passes(i): return 8 if '32x32' in i.op else 4
        for ins in self.L:
            k = ins.kind
            if k == 'mark': region = ins.meta['name']
            if k in ('label', 'dir', 'mark', 'reset'):
                out.append(ins); continue
            need = 0; why = None
            rd = set(ins.src) | set(ins.srcC); wr = set(ins.dst)
            dist = 0
            for p in reversed(hist):
                req = 0
                pd = set(p.dst); pk = p.kind
                vd = {r for r in pd if r[0] in 'va'}; sd = {r for r in pd if r[0] == 's'}
                if pk in ('valu', 'trans'):
                    if k == 'mfma' and vd & rd: req = max(req, 2)
                    if pk == 'trans' and k in ('valu', 'trans', 'vm', 'ds') and vd & rd: req = max(req, 1)
                    if ins.op.startswith(('v_readfirstlane', 'v_readlane')) and vd & rd: req = max(req, 1)
                    if ins.op.startswith('v_permlane') and vd & rd: req = max(req, 2)
                    if ('dpp' in ins.text or 'row_' in ins.text) and vd & rd: req = max(req, 2)
                    if k in ('valu', 'trans', 'mfma') and sd & rd: req = max(req, 2)
                    if ins.op.startswith(('v_readlane', 'v_writelane')) and sd & rd: req = max(req, 4)
                    if k == 'vm' and sd & rd: req = max(req, 5)
                    if k == 'salu' and sd & rd: req = max(req, 1)
                    if ('op_sel' in p.text and not p.op.startswith('v_pk')) or 'sdwa' in p.text:
                        if vd & rd: req = max(req, 1)
                    if ('s', 'exec_lo') in sd and k == 'mfma': req = max(req, 4)
                    if p.op.startswith('v_dot') and vd & (rd | wr):
                        accd = ins.op == p.op and not (vd & set(ins.meta.get('ab', [])))
                        if not accd: req = max(req, 3)
                if pk == 'mfma':
                    n = passes(p)
                    if k == 'mfma':
                        if vd & set(ins.src): req = max(req, n + 4)
                        c = set(ins.srcC)
                        if vd & c and not (c == vd and passes(ins) == n): req = max(req, n + 2)
                        if vd & wr and not (vd & c): req = max(req, n + 2)
                    elif k in ('valu', 'trans', 'vm', 'ds'):
                        if vd & (rd | wr): req = max(req, n + 4)
                        if k in ('valu', 'trans') and set(p.srcC) & wr: req = max(req, n - 1)
                if pk == 'salu':
                    if ('s', 'm0') in sd and ins.meta.get('dma'): req = max(req, 1)
                    if (('s', 'exec_lo') in sd or ('s', 'exec_hi') in sd) and ('dpp' in ins.text or 'row_' in ins.text): req = max(req, 5)
                if pk == 'vm' and p.meta.get('store') and len(p.meta['store']) > 2:
                    if set(p.meta['store']) & wr: req = max(req, 2 if k in ('valu', 'trans', 'mfma') else 1)
                if req - dist > need: need = req - dist; why = p
                dist += (int(p.text.split()[1]) + 1) if p.op == 's_nop' else 1
                if dist >= 20: break
            if need > 0:
                nop = Ins(f's_nop {need-1}'); out.append(nop); hist.append(nop)
                stats.setdefault(region, []).append((need, ins.text, why.text))
            out.append(ins); hist.append(ins)
            if len(hist) > 24: hist.pop(0)
        self.L = out
        if verbose:
            for r, l in stats.items():
                print(f'[nops] {r}: {len(l)} nops, {sum(x[0] for x in l)} states')
                for x in l[:verbose]: print('     ', x)

    def estimate(self):
        res = []; cur = ['start', 0, 0, 0]; prev = None; last_m = -100
        for ins in self.L:
            k = ins.kind
            if k == 'mark':
                res.append(cur); cur = [ins.meta['name'], 0, 0, 0]; last_m = -100; continue
            if k in ('label', 'dir', 'reset'): continue
            c = 4
            if k == 'mfma':
                if cur[1] - last_m < 32: cur[1] = last_m + 32
                last_m = cur[1]; c = 8; cur[2] += 1
            elif k == 'trans': c = 8
            elif k in ('salu', 'sctl', 'smem'):
                c = 0 if (prev is not None and prev.kind == 'mfma') else 4
                if ins.op == 's_nop': c = max(c, 4 * 0 + int(ins.text.split()[1]) + 1) if c else int(ins.text.split()[1])
            elif k in ('ds', 'vm'):
                c = 12 if (prev is not None and prev.kind in ('valu', 'trans')) else 4
            cur[1] += c; cur[3] += 1; prev = ins
        res.append(cur)
        tot = 0
        for n, c, m, cnt in res:
            tot += c; print(f'[est] {n:24s} {c:6d} cyc  {m:4d} mfma {cnt:5d} ins   cum {tot}')

    def text(self):
        return '\n'.join(('' if i.kind == 'label' else '    ') + i.text for i in self.L) + '\n'
```

```python
from gen import *

def Sb(n): return 16 + 16 * (n & 1)
def Pb(n): return 48 + 8 * (n & 1)
def kvr(kt, pc): return ar(32 + 16 * (kt & 3) + 4 * pc)
def oacc(u): return ar(128 + 16 * u, 16) if u < 3 else vr(64, 16)
def qk(n, a):
    d = vr(Sb(n), 16)
    return f'{MF} {d}, {kvr(n >> 2, a)}, {ar(96 + 8 * (n & 3) + 4 * a)}, {d if a else 0}'
def pv(n, a):
    d = oacc(n & 3)
    return f'{MF} {d}, {kvr(n >> 2, 2 + a)}, {vr(Pb(n) + 4 * a)}, {0 if (n < 4 and a == 0) else d}'
def dn(k, t):
    d = ar(176 + 16 * t, 16)
    return f'{MF} {d}, {vr(208 + 16 * (k & 1) + 4 * t)}, {vr(80 + 4 * (k & 7))}, {d if k else 0}'
def dn_reads(k):
    L = []
    for t in range(4): L += tr_pair(208 + 16 * (k & 1) + 4 * t, 'v', blk_addr(f'D{t}', k), DDR, 512)
    return L
def srcs(text):
    ops = [o.strip() for o in text.split(None, 1)[1].split(',')]
    return ops[1:3]

def late_setup(s):
    S = s.S
    S.push(f'''s_lshl2_add_u32 {sT2}, {sI}, {sKQ}
        s_mul_i32 {sT2}, {sT2}, {32 * 896}
        s_mul_i32 {sT3}, {sNQ}, 224
        s_add_u32 {sT2}, {sT2}, {sT3}
        s_mul_i32 {sT3}, {sW}, 56
        s_add_u32 {sT2}, {sT2}, {sT3}
        v_bfe_u32 v200, v1, 4, 5
        v_mul_u32_u24 v200, 896, v200
        v_lshrrev_b32 v201, 6, v1
        v_and_b32 v201, 8, v201
        v_add3_u32 v200, v200, v201, {sT2}
        v_lshlrev_b32 v201, 28, v201
        v_or_b32 v201, v201, v200''', key='late', prio=-1)
    for q in range(4):
        S.push(f'buffer_load_dwordx2 {vr(192 + 2 * q, 2)}, v200, {X}, 0 offen offset:{16 * q}', key='late', prio=-1)
    for u in range(3):
        S.push(f'''s_add_u32 {sT2}, {sW}, {1 + u}
            s_and_b32 {sT2}, {sT2}, 3
            s_mul_i32 {sT2}, {sT2}, 12288
            s_add_u32 {sT2}, {sT2}, {MRG + 4096 * u}
            v_add_u32 v{202 + u}, {sT2}, v1''', key='late', prio=-1)
    S.push(f'''s_mul_i32 {sT2}, {sW}, 12288
        s_add_u32 {sT2}, {sT2}, {MRG}
        v_add_u32 v205, {sT2}, v1
        s_mul_i32 {sT2}, {sKQ}, {448 * 896}
        s_mul_i32 {sT3}, {sW}, {16 * 896 - 56}
        s_add_u32 {sT2}, {sT2}, {sT3}
        v_subrev_u32 v240, {sT2}, v8
        v_add_u32 v241, 13312, v240
        v_add_u32 v242, {2 * 13312}, v240
        v_add_u32 v243, {3 * 13312}, v240
        s_mul_i32 {sWo}, {sW}, {SLOT}''', key='late', prio=-1)

def phase2(s):
    P, S, o = s.P, s.S, s.opt
    D0 = o.get('d0', 13); NS = 64
    P.mark('p2head'); s.stamp('p2')
    S.force_key('kvl', 'late')
    P(qk(0, 0)); P(qk(0, 1))
    s.hmul(A3, A1, 16, 248, 4, 0)
    S.force_key('gate', 'hmul')
    S.force(lambda a: a.cls == 'valu')
    T0 = S.now
    def at(step, g=0): return T0 + 8 * step + g - S.now
    S.push_wait('hst', delay=at(o.get('hflag', 4)), key='hf')
    S.push(f'buffer_store_dword v12, v11, {WS}, {sHfl} offen sc1', key='hf', prio=2)
    S.push(f'buffer_load_dword v245, v9, {WS}, {sHpl} offen sc1', delay=at(o.get('hpoll', 6)), key='hp', prio=2)
    def hload(k):
        S.push(f'buffer_load_dwordx4 {vr(80 + 4 * (k & 7))}, v1, {WS}, {sHld} offen offset:{1024 * (k & 3)} sc1', key=f'h{k}', prio=2)
        if k & 3 == 3: S.push(f's_add_u32 {sHld}, {sHld}, 4096', key=f'h{k}', prio=2)
    plan = []
    for n in range(NS):
        k = n - D0
        q = [qk(n + 1, a) if n + 1 < NS else None for a in range(2)]
        p = [pv(n - 1, a) if n else None for a in range(2)]
        if 0 <= k < 28: plan.append([dn(k, 0), q[0], q[1], p[0], dn(k, 1), p[1], dn(k, 2), dn(k, 3)])
        else: plan.append([None, q[0], None, q[1], None, p[0], None, p[1]])
    flat = [(n, g) for n in range(NS) for g in range(8) if plan[n][g]]
    nxt = {flat[j]: plan[flat[j + 1][0]][flat[j + 1][1]] for j in range(len(flat) - 1)}
    for n in range(NS):
        kt, u, k = n >> 2, n & 3, n - D0
        if n in (D0, D0 + 28, 0): P.mark(f'step{n}'); s.stamp(f's{n}')
        if kt + 3 < 16:
            S.push(f'buffer_load_dwordx4 {kvr(kt + 3, u)}, v1, {WS}, {sKVld} offen offset:{1024 * u} sc1', key=f'kv{kt + 3}', prio=3)
            if u == 3: S.push(f's_add_u32 {sKVld}, {sKVld}, 4096', key=f'kv{kt + 3}', prio=3)
        if 1 <= k <= 20: hload(k + 7)
        rd = dn_reads(k + 1) if -1 <= k < 27 else []
        if n == D0 + 28:
            for t in range(4):
                for q in range(4):
                    S.push(f'buffer_store_dwordx4 {ar(176 + 16 * t + 4 * q)}, v1, {WS}, {sPst} offen offset:{1024 * q} sc1', delay=2, tag='pst', key='pst', prio=2)
                if t < 3: S.push(f's_add_u32 {sPst}, {sPst}, 16384', key='pst', prio=2)
            S.push(f's_mov_b32 {sT3}, 0', key='wo', prio=2)
            for c in range(7):
                S.push(f's_add_u32 m0, {sWo}, {4096 * c}', key='wo', prio=2)
                for j in range(4):
                    S.push(f'buffer_load_dwordx4 v{240 + j}, {WO}, {sT3} offen offset:{1024 * j} lds', tag='wo', key='wo', prio=2)
                S.push(f's_add_u32 {sT3}, {sT3}, 57344', key='wo', prio=2)
                if c == o.get('pflagc', 3):
                    S.push_wait('pst', key='pf'); S.push(f'buffer_store_dword v12, v11, {WS}, {sPfl} offen sc1', key='pf', prio=2)
        if n == o.get('ppoll', 60): S.push(f'buffer_load_dword v246, v9, {WS}, {sPpl} offen sc1', key='pp', prio=2)
        if n >= 62:
            for q in range(4):
                S.push(f'ds_write_b128 v{202 + n - 62}, {ar(128 + 16 * (n - 62) + 4 * q)} offset:{1024 * q}', delay=1, key='mw', prio=2)
        nm = sum(1 for x in plan[n] if x)
        for g in range(8):
            m = plan[n][g]
            if m:
                S.force_for(m); P(m)
                if (n, g) in nxt:
                    S.force_for(nxt[n, g]); P.need(*srcs(nxt[n, g]))
                if n == o.get('hchk', 9) and g == 1:
                    S.force_key('hp'); P(s.check('H', 245, 9, sHpl))
                    for k2 in range(8): hload(k2)
                if n == D0 - 1 and g == 1 and rd:
                    s.barrier(('D0', 'D1', 'D2', 'D3'), ('D0', 'D1', 'D2', 'D3'))
                if n == D0 + 28 and g == 1: P('s_barrier')
                take = -(-len(rd) // nm) if rd else 0
                for l in rd[:take]: P(l)
                rd = rd[take:]; nm -= 1
                S.fill(o.get('xb', 12) if not (0 <= k < 28) else 4, ('vm', 'ds', 'salu', 'fence'), maxn=o.get('xn', 2))
            r = Sb(n) + 2 * g
            P(f'v_exp_f32 v{r}, v{r}\nv_exp_f32 v{r + 1}, v{r + 1}')
            if g: P(f'v_cvt_pk_bf16_f32 v{Pb(n) + g - 1}, v{r - 2}, v{r - 1}')
            elif n: P(f'v_cvt_pk_bf16_f32 v{Pb(n - 1) + 7}, v{Sb(n - 1) + 14}, v{Sb(n - 1) + 15}')
            S.now += 1
    P.mark('merge'); s.stamp('merge')
    S.flush()
    P(pv(63, 0))
    P(f'v_cvt_pk_bf16_f32 v{Pb(63) + 7}, v{Sb(63) + 14}, v{Sb(63) + 15}')
    P(f's_mov_b32 {sC0}, {fb(LN2 * LN2)}')
    P(pv(63, 1))
    for q in range(4): P(f'ds_write_b128 v204, {ar(160 + 4 * q)} offset:{1024 * q}')
    P('s_waitcnt lgkmcnt(0)\ns_barrier')
    order = [3, 0, 1, 2]
    for q in order:
        for u in range(3): P(f'ds_read_b128 {vr(80 + 16 * u + 4 * q)}, v205 offset:{4096 * u + 1024 * q}')
    def madd(q):
        for u in range(3):
            for e in range(4): P(f'v_add_f32 v{64 + 4 * q + e}, v{64 + 4 * q + e}, v{80 + 16 * u + 4 * q + e}')
    madd(3)
    P('v_mov_b32 v16, v76\nv_mov_b32 v17, v76')
    madd(0)
    P('v_permlane32_swap_b32 v16, v17')
    madd(1)
    P(f's_mov_b32 {sC1}, 0x1e000000\nv_subrev_u32 v18, 0x30800000, v17')
    madd(2)
    P(f'v_cmp_lt_u32 vcc, {sC1}, v18\ns_cbranch_vccnz FB\nFB_RET:')
    P(f'v_rcp_f32 v17, v17\ns_nop 0\nv_mul_f32 v17, {sC0}, v17')
    for a in range(2):
        for r in range(4 * a, 4 * a + 4):
            P(f'v_mul_f32 v{64 + 2 * r}, v17, v{64 + 2 * r}\nv_mul_f32 v{65 + 2 * r}, v17, v{65 + 2 * r}\nv_cvt_pk_bf16_f32 v{48 + r}, v{64 + 2 * r}, v{65 + 2 * r}')
        if a: P(f'v_cndmask_b32 v54, v54, 0, {HIM}\nv_cndmask_b32 v55, v55, 0, {HIM}')
        P(f'buffer_store_dwordx4 {vr(48 + 4 * a)}, v1, {WS}, {sOst} offen offset:{1024 * a} sc1', tag='ost')
    s.tail.append(fallback())
    phase3(s)

def fallback():
    L = [f'v_accvgpr_read_b32 v{16 + r}, a{120 + r}' for r in range(8)]
    L += [f'''v_cndmask_b32 v22, v22, 0, {HIM}
        s_lshl_b32 {sT0}, {sH}, 18
        s_add_u32 {sT0}, {sT0}, {KV}
        s_mov_b32 {sT1}, {sT0}
        s_mov_b32 {sCNT}, 64
        v_mov_b32 v24, 0xff800000
        FB1:
        buffer_load_dwordx4 v[80:83], v1, {WS}, {sT1} offen sc1
        buffer_load_dwordx4 v[84:87], v1, {WS}, {sT1} offen offset:1024 sc1
        s_waitcnt vmcnt(0)
        {MF} v[32:47], v[80:83], v[16:19], 0
        {MF} v[32:47], v[84:87], v[20:23], v[32:47]''']
    L += [f'v_max3_f32 v24, v24, v{32 + 2 * r}, v{33 + 2 * r}' for r in range(8)]
    L += [f'''s_add_u32 {sT1}, {sT1}, 4096
        s_sub_u32 {sCNT}, {sCNT}, 1
        s_cmp_lg_u32 {sCNT}, 0
        s_cbranch_scc1 FB1
        v_mov_b32 v25, v24
        s_mov_b32 {sCNT}, 64
        v_permlane32_swap_b32 v24, v25
        v_max_f32 v24, v24, v25''']
    L += [f'v_mov_b32 v{64 + r}, 0' for r in range(16)]
    L += ['FB2:'] + [f'buffer_load_dwordx4 {vr(80 + 4 * p)}, v1, {WS}, {sT0} offen offset:{1024 * p} sc1' for p in range(4)]
    L += [f'''s_waitcnt vmcnt(0)
        {MF} v[32:47], v[80:83], v[16:19], 0
        {MF} v[32:47], v[84:87], v[20:23], v[32:47]''']
    L += [f'v_sub_f32 v{32 + r}, v{32 + r}, v24' for r in range(16)]
    L += [f'v_exp_f32 v{32 + r}, v{32 + r}' for r in range(16)]
    L += [f'v_cvt_pk_bf16_f32 v{48 + r}, v{32 + 2 * r}, v{33 + 2 * r}' for r in range(8)]
    L += [f'''{MF} v[64:79], v[88:91], v[48:51], v[64:79]
        {MF} v[64:79], v[92:95], v[52:55], v[64:79]
        s_add_u32 {sT0}, {sT0}, 4096
        s_sub_u32 {sCNT}, {sCNT}, 1
        s_cmp_lg_u32 {sCNT}, 0
        s_cbranch_scc1 FB2
        v_mov_b32 v16, v76
        v_mov_b32 v17, v76
        v_permlane32_swap_b32 v16, v17
        s_nop 1
        s_branch FB_RET''']
    return 'FB:\n' + '\n'.join(L)

def phase3(s):
    P, S, o = s.P, s.S, s.opt
    P.mark('p3'); s.stamp('ost')
    P(s.check('P', 246, 9, sPpl))
    for kq in range(4):
        for q in range(4): P(f'buffer_load_dwordx4 {vr(128 + 16 * kq + 4 * q)}, v1, {WS}, {sPld} offen offset:{1024 * q} sc1')
        if kq < 3: P(f's_add_u32 {sPld}, {sPld}, 4096')
    P('v_lshrrev_b32 v16, 1, v1\nv_and_b32 v16, 0x100, v16')
    for gg in range(4):
        P(f'''s_add_u32 {sT0}, {sW}, {gg}
            s_and_b32 {sT0}, {sT0}, 3
            s_mul_i32 {sT1}, {sT0}, 7168
            s_add_u32 {sT1}, {sT1}, {sWo}
            s_mul_i32 {sT0}, {sT0}, {SLOT}
            v_add_u32 v{20 + gg}, {sT1}, v5
            v_add_u32 v{202 + gg}, {sT0}, v1
            v_sub_u32 v{24 + gg}, v{20 + gg}, v16''')
    P(f'''s_or_b32 {sT0}, s2, {sW}
        s_cmp_eq_u32 {sT0}, 0
        s_cselect_b32 {sT0}, 0, 0x80000000
        v_or_b32 v206, {sT0}, v11''')
    P.wait_tag('ost'); P(f'buffer_store_dword v12, v11, {WS}, {sOfl} offen sc1')
    s.stamp('oflag')
    P.wait_tag('wo')
    def wo_reads(gg):
        for hh in range(4):
            for a in range(2):
                d = 32 * gg + 8 * hh + 4 * a; imm = (28 * hh + 16 * a) * 64
                P(f'ds_read_b64_tr_b16 a[{d}:{d + 1}], v{20 + gg} offset:{imm}')
                P(f'ds_read_b64_tr_b16 a[{d + 2}:{d + 3}], v{(24 if (hh == 3 and a) else 20) + gg} offset:{imm + 512}')
    for gg in range(4): wo_reads(gg)
    P(f'buffer_load_dword v247, v9, {WS}, {sOpl} offen sc1')
    def silu(r0, r1):
        for r in range(r0, r1, 2):
            for kq in range(1, 4):
                P(f'v_add_f32 v{128 + r}, v{128 + r}, v{128 + 16 * kq + r}\nv_add_f32 v{129 + r}, v{129 + r}, v{129 + 16 * kq + r}')
            P(f'''v_exp_f32 v28, -v{128 + r}
                v_exp_f32 v29, -v{129 + r}
                v_add_f32 v28, 1.0, v28
                v_add_f32 v29, 1.0, v29
                v_rcp_f32 v28, v28
                v_rcp_f32 v29, v29
                v_mul_f32 v{128 + r}, v{128 + r}, v28
                v_mul_f32 v{129 + r}, v{129 + r}, v29''')
    sp = o.get('silusplit', 6)
    silu(0, sp)
    s.stamp('fchk')
    P(s.check('F', 247, 9, sOpl))
    s.stamp('fok')
    for j in range(8):
        P(f'buffer_load_dwordx4 {vr(208 + 4 * j)}, v1, {WS}, {sOld if j < 4 else sOld2} offen offset:{1024 * (j & 3)} sc1')
    silu(sp, 16)
    for r in range(8):
        P(f'v_lshlrev_b32 v{144 + 2 * r}, 16, v{192 + r}\nv_and_b32 v{145 + 2 * r}, 0xffff0000, v{192 + r}')
    P('s_waitcnt lgkmcnt(0)')
    for j in range(8): P(f'ds_write_b128 v202, {vr(208 + 4 * j)} offset:{1024 * j}')
    s.stamp('oland')
    acc = vr(112, 16)
    P(f'{MF} {acc}, {ar(0)}, {vr(208)}, 0')
    P('s_waitcnt lgkmcnt(0)\ns_barrier')
    rds = [f'ds_read_b128 {vr(16 + 32 * (gg - 1) + 4 * j)}, v{202 + gg} offset:{1024 * j}' for gg in range(1, 4) for j in range(8)]
    ms = [f'{MF} {acc}, {ar(4 * j)}, {vr(208 + 4 * j) if j < 8 else vr(16 + 4 * (j - 8))}, {acc}' for j in range(1, 32)]
    for j, m in enumerate(ms):
        for l in rds[:3]: P(l)
        rds = rds[3:]
        P(m)
        if j + 1 < len(ms): P.need(*srcs(ms[j + 1]))
        if j == 10: P(f'buffer_store_dword v12, v206, {WS}, 0 offen sc1')
    s.stamp('mm')
    for q in range(4):
        for e in range(4): P(f'v_fma_f32 v{144 + 4 * q + e}, v{112 + 4 * q + e}, v{128 + 4 * q + e}, v{144 + 4 * q + e}')
        P(f'v_cvt_pk_bf16_f32 v{192 + 2 * q}, v{144 + 4 * q}, v{145 + 4 * q}\nv_cvt_pk_bf16_f32 v{193 + 2 * q}, v{146 + 4 * q}, v{147 + 4 * q}')
        P(f'buffer_store_dwordx2 {vr(192 + 2 * q, 2)}, v{201 if q == 3 else 200}, {OUT}, 0 offen offset:{16 * q}')
```

```python
from asmlib import Ins, regs_of

class Item:
    def __init__(s, lines, earliest, tag, key, cost, pseudo=None, prio=0):
        s.prio = prio
        s.lines = lines; s.earliest = earliest; s.tag = tag; s.key = key; s.pseudo = pseudo
        s.ins = [Ins(l, tag) for l in lines]
        s.dst = set(); s.src = set()
        for i in s.ins:
            s.dst |= set(i.dst); s.src |= set(i.src) | set(i.srcC)
        kinds = [i.kind for i in s.ins]
        if pseudo: s.cls = 'fence'
        elif 'mfma' in kinds: s.cls = 'mfma'
        elif kinds[0] == 'vm': s.cls = 'vm'
        elif kinds[0] == 'ds': s.cls = 'ds'
        elif kinds[0] in ('salu', 'sctl'): s.cls = 'salu'
        else: s.cls = 'valu'
        if cost is None:
            cost = 0
            for i in s.ins:
                if i.kind == 'trans': cost += 8
                elif i.kind == 'vm': cost += 8 if i.meta.get('dma') else 4
                elif i.kind == 'mfma': cost += 8
                elif i.kind in ('label', 'dir'): cost += 0
                else: cost += 4
            if pseudo: cost = 4
        s.cost = cost

def conflict(a_dst, a_src, b_dst, b_src):
    return bool(a_dst & (b_src | b_dst)) or bool(a_src & b_dst)

class Sched:
    def __init__(s, P):
        s.P = P; s.q = []; s.now = 0; s.log = []
    def push(s, text, delay=0, tag=None, key=None, cost=None, group=False, prio=0):
        lines = [l.strip() for l in text.split('\n') if l.strip()]
        if group: s.q.append(Item(lines, s.now + delay, tag, key, cost, prio=prio))
        else:
            for l in lines: s.q.append(Item([l], s.now + delay, tag, key, cost, prio=prio))
    def push_wait(s, *tags, delay=0, key=None, prio=1):
        s.q.append(Item([], s.now + delay, None, key, None, pseudo=tags, prio=prio))
    def dep(s, a, b):
        if conflict(a.dst, a.src, b.dst, b.src): return True
        mem = ('vm', 'fence')
        if a.cls in mem and b.cls in mem: return True
        if a.cls == 'ds' and b.cls == 'ds': return True
        return False
    def ready(s, j):
        b = s.q[j]
        for a in s.q[:j]:
            if s.dep(a, b): return False
        return True
    def emit(s, j):
        it = s.q.pop(j)
        if it.pseudo: s.P.wait_tag(*it.pseudo)
        for l in it.lines: s.P(l, it.tag)
        s.log.append((s.now, it.key, it.lines[0] if it.lines else 'wait'))
        return it.cost
    def last_trans_dst(s):
        for i in reversed(s.P.L):
            if i.kind in ('need', 'wtag', 'mark', 'dir', 'label'): continue
            return set(i.dst) if i.kind == 'trans' else set()
        return set()
    def fill(s, budget, classes, maxn=99):
        used = 0; n = 0
        while n < maxn and used < budget:
            pick = None; td = s.last_trans_dst()
            for j, it in sorted(enumerate(s.q), key=lambda e: (-e[1].prio, e[0])):
                if it.cls not in classes or it.earliest > s.now: continue
                if used + it.cost > budget + 4: continue
                if td & it.src: continue
                if s.ready(j): pick = j; break
            if pick is None: break
            used += s.emit(pick); n += 1
        return used
    def force(s, pred):
        must = [False] * len(s.q)
        for j in range(len(s.q) - 1, -1, -1):
            if pred(s.q[j]): must[j] = True
            if must[j]:
                for k in range(j):
                    if s.dep(s.q[k], s.q[j]): must[k] = True
        used = 0; j = 0
        for m in must:
            if m: used += s.emit(j)
            else: j += 1
        return used
    def force_for(s, text):
        i = Ins(text); d = set(i.dst); r = set(i.src) | set(i.srcC)
        return s.force(lambda a: conflict(a.dst, a.src, d, r))
    def force_key(s, *keys):
        return s.force(lambda a: a.key in keys)
    def flush(s):
        return s.force(lambda a: True)
```

```python
import sys, os, struct, math
sys.path.insert(0, os.path.dirname(os.path.abspath(__file__)))
from asmlib import Prog
from sched import Sched

NAME = 'recurrent_scan__mha_block__swiglu_ffn__prompt'
def fb(x): return '0x%08x' % struct.unpack('<I', struct.pack('<f', x))[0]
LOG2E = 1.4426950408889634; LN2 = 0.6931471805599453
KVF, HF, PF, FF = 0x1000, 0x2000, 0x3000, 0x4000
KV, HB, PART, OB, PROF, WS_SZ = 0x10000, 0x410000, 0xB10000, 0x1B10000, 0x1F00000, 0x2000000
SLOT = 28672; QX = 143360; WD3H = 151552; MRG = 114688
X, QKV, WO, G, U, WD, OUT, WS, MS = [f's[{b}:{b+3}]' for b in (4, 8, 12, 16, 20, 24, 28, 32, 36)]
sW, sH, sI, sKQ, sNQ, sWB, sNON, sCNT = [f's{i}' for i in range(40, 48)]
T2688, T3584, T896 = 48, 54, 60
(sKVst, sKVfl, sKVpl, sKVld, sHst, sHst2, sHfl, sHpl, sHld, sPst, sPfl, sPpl, sPld, sOst, sOfl, sOpl, sOld, sOld2,
 s14336) = [f's{i}' for i in range(66, 85)]
sT0, sT1, sT2, sT3 = 's85', 's86', 's87', 's88'
sW3, sC0, sC1, sWo = 's89', 's90', 's91', 's92'
HIM, L28 = 's[94:95]', 's[96:97]'
SPIN_MAX = 200000
def vr(b, n=4): return f'v[{b}:{b+n-1}]'
def ar(b, n=4): return f'a[{b}:{b+n-1}]'
A0, A1, A2, A3, A4 = 128, 144, 160, 176, 192
MF = 'v_mfma_f32_32x32x16_bf16'

TL = dict(
    Q=(0, 4096, 0, QKV, 11, T2688), K=(SLOT, SLOT + 4096, 896, QKV, 11, T2688),
    V=(2 * SLOT, 2 * SLOT + 4096, 0, QKV, 12, T2688), M=(3 * SLOT, 3 * SLOT + 4096, 0, MS, 13, T3584),
    G0=(4 * SLOT, 4 * SLOT + 4096, 0, G, 7, T3584), U0=(0, 2 * SLOT, 0, U, 7, T3584),
    G1=(SLOT, 3 * SLOT, 64, G, 7, T3584), U1=(2 * SLOT + 3072, 4096, 64, U, 7, T3584),
    G2=(3 * SLOT + 3072, SLOT + 4096, 128, G, 7, T3584), U2=(4 * SLOT, 4 * SLOT + 4096, 128, U, 7, T3584),
    D0=(0, 2 * SLOT, 0, WD, 8, T896), D1=(SLOT, 3 * SLOT, 56, WD, 8, T896),
    D2=(2 * SLOT + 3072, 4096, 112, WD, 8, T896), D3=(3 * SLOT + 3072, WD3H, 168, WD, 8, T896))

def dma_m0(t, grp):
    lo, hi, co = TL[t][:3]
    if t == 'D3' and grp == 1: return f's_add_u32 m0, {sW3}, {hi - co}'
    return f's_add_u32 m0, {sWB}, {(lo, hi)[grp] - co}'
def dma_ins(t, c):
    lo, hi, co, srd, v, tb = TL[t]
    so = '0' if c == 0 else f's{tb + c - 1}'
    return f'buffer_load_dwordx4 v{v}, {srd}, {so} offen offset:{1024 * (c & 3) + co} lds'
def blk_addr(t, s):
    lo, hi = TL[t][:2]; c = s >> 2
    ws = 3072 if (t == 'D3' and c >= 4) else 7168
    return (lo if c < 4 else hi) + ws * (s & 3) + 1024 * (c & 3)
def tr_pair(dst, kind, addr, bases, second):
    for b, reg in bases:
        if 0 <= addr - b and addr - b + second <= 65535:
            return [f'ds_read_b64_tr_b16 {kind}[{dst}:{dst+1}], v{reg} offset:{addr - b}',
                    f'ds_read_b64_tr_b16 {kind}[{dst+2}:{dst+3}], v{reg} offset:{addr - b + second}']
    raise ValueError(addr)
NAT = ((0, 2), (57344, 3), (114688, 4)); DDR = ((0, 5), (57344, 6), (114688, 13))

class Gen:
    def __init__(s, stop=None, prof=False, **opt):
        s.P = Prog(); s.S = Sched(s.P); s.stop = stop; s.prof = prof; s.tail = []; s.nst = 0; s.opt = opt
        s.stamps = []
    def stamp(s, name):
        if not s.prof: return
        s.P(f's_memtime s[100:101]\ns_waitcnt lgkmcnt(0)\nv_writelane_b32 v0, s100, {s.nst}')
        s.stamps.append(name); s.nst += 1
    def check(s, name, vreg, voff, sbase):
        s.tail.append(f'''SPIN_{name}:
            s_mov_b32 {sCNT}, 0
            SPINL_{name}:
            buffer_load_dword v{vreg}, v{voff}, {WS}, {sbase} offen sc1
            s_waitcnt vmcnt(0)
            v_cmp_ne_u32 vcc, {sNON}, v{vreg}
            s_cbranch_vccz RET_{name}
            s_add_u32 {sCNT}, {sCNT}, 1
            s_cmp_lt_u32 {sCNT}, {SPIN_MAX}
            s_cbranch_scc1 SPINL_{name}
            s_branch RET_{name}''')
        return f'v_cmp_ne_u32 vcc, {sNON}, v{vreg}\ns_cbranch_vccnz SPIN_{name}\nRET_{name}:'
    def push_tile(s, t, delay=0, prio=2):
        S = s.S
        for c in range(7):
            if c in (0, 4): S.push(dma_m0(t, c >> 2), delay=delay, key=t, prio=prio)
            S.push(dma_ins(t, c), delay=delay, tag=t, key=t, prio=prio)

    def prologue(s):
        P = s.P
        P('s_cmp_ge_u32 s2, 0x100\ns_cbranch_scc1 END')
        if s.prof: P('s_memtime s[98:99]')
        for r, o in ((4, 0), (32, 72), (8, 8), (16, 32), (20, 40), (24, 48), (12, 16), (28, 56)):
            P(f's_load_dwordx2 s[{r}:{r+1}], s[0:1], {o}')
        P(f'''v_lshrrev_b32 v1, 6, v0
            v_and_b32 v0, 63, v0
            s_and_b32 {sKQ}, s2, 3
            v_readfirstlane_b32 {sW}, v1
            s_bfe_u32 {sNQ}, s2, 0x20003
            s_lshr_b32 {sI}, s2, 5
            s_and_b32 {sT0}, s2, 4
            s_lshl1_add_u32 {sI}, {sT0}, {sI}
            s_lshl2_add_u32 {sH}, {sKQ}, {sNQ}
            s_lshl2_add_u32 {sT1}, {sI}, {sW}
            s_mul_i32 {sWB}, {sW}, 7168
            s_mul_i32 {sT2}, {sT1}, {32 * 896}
            v_lshrrev_b32 v128, 3, v0
            v_and_b32 v129, 7, v0
            v_lshrrev_b32 v130, 4, v0
            v_xor_b32 v129, v129, v130
            v_mul_u32_u24 v128, 896, v128
            v_lshl_add_u32 v128, v129, 4, v128
            v_add_u32 v248, {sT2}, v128
            v_xor_b32 v249, 64, v248
            v_add_u32 v249, 7168, v249
            s_mov_b32 s6, 1835008
            s_mov_b32 s7, 0x20000
            s_mov_b32 {s14336}, 14336
            s_mov_b32 s34, {WS_SZ}
            s_mov_b32 s35, 0x20000''')
        sal = []
        for b, n in ((8, 1204224), (16, 1605632), (20, 1605632), (24, 1605632), (12, 401408), (28, 1835008), (36, 1605632)):
            sal += [f's_mov_b32 s{b+2}, {n}', f's_mov_b32 s{b+3}, 0x20000']
        for tb, st in ((T2688, 2688), (T3584, 3584), (T896, 896)):
            sal += [f's_mov_b32 s{tb + c - 1}, {64 * c * st - 1024 * (c & 3)}' for c in range(1, 7)]
        P('s_waitcnt lgkmcnt(0)')
        k = 0
        for c in range(7):
            for rg in range(4):
                P(f's_add_u32 m0, {sWB}, {rg * SLOT + 896 * c}')
                P(sal[k]); k += 1
                P(f'buffer_load_dwordx4 v{248 + (rg & 1)}, {X}, {s14336 if rg >= 2 else 0} offen offset:{128 * c} lds', tag=f'x{c}')
        P('buffer_load_dword v131, off, %s, 0 sc1' % WS, tag='non')
        for l in sal[k:]: P(l)
        P(f'''s_bitcmp1_b32 {sW}, 0
            s_cselect_b32 s36, s20, s16
            s_cselect_b32 s37, s21, s17
            s_lshl_b32 {sT0}, {sH}, 6
            s_add_u32 {sT2}, {sT0}, {sT1}
            s_lshl_b32 {sKVst}, {sT2}, 12
            s_add_u32 {sKVst}, {sKVst}, {KV}
            s_lshl2_add_u32 {sKVfl}, {sT2}, {KVF}
            s_lshl4_add_u32 {sT2}, {sW}, {sT0}
            s_lshl2_add_u32 {sKVpl}, {sT2}, {KVF}
            s_lshl_b32 {sKVld}, {sT2}, 12
            s_add_u32 {sKVld}, {sKVld}, {KV}
            s_lshl4_add_u32 {sT2}, {sT1}, {sH}
            s_mul_i32 {sHst}, {sT2}, 7168
            s_add_u32 {sHst}, {sHst}, {HB}
            s_add_u32 {sHst2}, {sHst}, 4096
            s_lshl2_add_u32 {sHfl}, {sT2}, {HF}
            s_lshl2_add_u32 {sOfl}, {sT2}, {FF}
            s_lshl_b32 {sOst}, {sT2}, 11
            s_add_u32 {sOst}, {sOst}, {OB}
            s_sub_u32 {sT2}, {sT2}, {sNQ}
            s_lshl2_add_u32 {sHpl}, {sT2}, {HF}
            s_mul_i32 {sHld}, {sT2}, 7168
            s_add_u32 {sHld}, {sHld}, {HB}
            s_lshl2_add_u32 {sT2}, {sT1}, {sNQ}
            s_lshl2_add_u32 {sT3}, {sT2}, {sKQ}
            s_lshl2_add_u32 {sPfl}, {sT3}, {PF}
            s_lshl4_add_u32 {sT3}, {sT2}, {sKQ}
            s_lshl_b32 {sPst}, {sT3}, 12
            s_add_u32 {sPst}, {sPst}, {PART}
            s_lshl2_add_u32 {sT0}, {sI}, {sKQ}
            s_lshl2_add_u32 {sT2}, {sT0}, {sNQ}
            s_lshl4_add_u32 {sPpl}, {sT2}, {PF}
            s_lshl2_add_u32 {sT2}, {sT2}, {sW}
            s_lshl_b32 {sPld}, {sT2}, 14
            s_add_u32 {sPld}, {sPld}, {PART}
            s_lshl2_add_u32 {sT2}, {sT0}, {sW}
            s_lshl4_add_u32 {sOpl}, {sT2}, {FF}
            s_lshl_b32 {sOld}, {sT2}, 13
            s_add_u32 {sOld}, {sOld}, {OB}
            s_add_u32 {sOld2}, {sOld}, 4096
            s_mul_i32 {sW3}, {sW}, 3072
            s_mov_b32 s94, 0
            s_mov_b32 s95, -1
            s_mov_b32 s96, 0x10000000
            s_mov_b32 s97, 0x10000000''')
        P(f'''v_lshlrev_b32 v1, 4, v0
            v_lshrrev_b32 v128, 5, v0
            v_bfe_u32 v129, v0, 2, 2
            v_lshl_add_u32 v129, v128, 3, v129
            v_bfe_u32 v130, v0, 4, 1
            v_and_b32 v132, 3, v0
            v_lshlrev_b32 v133, 3, v132
            v_lshl_add_u32 v2, v129, 6, v133
            v_lshl_add_u32 v2, v130, 5, v2
            v_add_u32 v3, 57344, v2
            v_add_u32 v4, 114688, v2
            v_lshl_add_u32 v5, v129, 5, v133
            v_add_u32 v5, {3 * SLOT}, v5
            v_add_u32 v6, 128, v5
            v_mul_u32_u24 v134, 7296, v130
            v_add_u32 v5, v134, v5
            v_mul_u32_u24 v134, 7040, v130
            v_add_u32 v6, v134, v6
            v_lshrrev_b32 v134, 2, v0
            s_lshl_b32 {sT2}, {sW}, 4
            v_add_u32 v134, {sT2}, v134
            v_lshlrev_b32 v135, 4, v132
            s_mul_i32 {sT2}, {sH}, 56
            v_mul_u32_u24 v11, 2688, v134
            v_add3_u32 v11, v11, v135, {sT2}
            v_add_u32 v12, 1792, v11
            s_mul_i32 {sT2}, {sH}, 224
            v_mul_u32_u24 v7, 3584, v134
            v_add3_u32 v7, v7, v135, {sT2}
            s_mul_i32 {sT3}, {sKQ}, {448 * 896}
            s_mul_i32 {sC0}, {sNQ}, 224
            s_add_u32 {sT3}, {sT3}, {sC0}
            v_mul_u32_u24 v8, 896, v134
            v_add3_u32 v8, v8, v135, {sT3}
            s_and_b32 {sT3}, {sW}, 1
            s_lshl_b32 {sT3}, {sT3}, 2
            v_lshrrev_b32 v134, 1, v0
            v_xor_b32 v134, {sT3}, v134
            s_lshr_b32 {sT3}, {sW}, 1
            s_lshl_b32 {sT3}, {sT3}, 5
            v_add_u32 v134, {sT3}, v134
            v_and_b32 v135, 1, v0
            v_lshlrev_b32 v135, 4, v135
            s_add_u32 {sT2}, {sT2}, 192
            v_mul_u32_u24 v13, 3584, v134
            v_add3_u32 v13, v13, v135, {sT2}
            v_and_b32 v14, 15, v0
            v_lshlrev_b32 v14, 2, v14
            v_mov_b32 v15, 0x3f803f80
            v_and_b32 v134, 31, v0
            v_lshrrev_b32 v135, 3, v134
            v_mul_u32_u24 v135, {SLOT}, v135
            v_and_b32 v136, 7, v0
            v_lshl_add_u32 v135, v136, 7, v135
            v_bfe_u32 v136, v0, 1, 3
            v_xor_b32 v136, v136, v128
            v_lshl_add_u32 v135, v136, 4, v135
            v_add_u32 v250, {sWB}, v135
            v_xor_b32 v251, 32, v250
            v_xor_b32 v252, 64, v250
            v_xor_b32 v253, 0x60, v250
            v_mov_b32 v254, 0
            v_mov_b32 v255, 0
            s_mov_b32 {sC0}, {fb(LN2 / math.sqrt(28.0))}
            s_mov_b32 {sC1}, {fb(LOG2E)}''')
        if s.prof:
            P('v_mov_b32 v0, 0\nv_writelane_b32 v0, s98, 0'); s.stamps.append('t0'); s.nst = 1
        s.stamp('xissued')

    def spare(s, j): return A4 + j if j < 16 else 208 + j - 16
    def xphase(s):
        P = s.P
        def valu(c):
            for r in range(16):
                x = 16 + 16 * c + r; j = 16 * c + r
                P(f'v_dot2c_f32_bf16 v254, v{x}, v15')
                if j < 56: P(f'v_lshlrev_b32 v{s.spare(j)}, 16, v{x}')
                P(f'v_dot2c_f32_bf16 v255, v{x}, v{x}')
                if j < 56: P(f'v_and_b32 v{x}, 0xffff0000, v{x}')
        for c in range(7):
            P.wait_tag(f'x{c}')
            for q in range(4): P(f'ds_read_b128 {vr(16 + 16 * c + 4 * q)}, v{250 + q} offset:{1024 * c}')
            if c: valu(c - 1)
            P.need(vr(16 + 16 * c, 16))
            for t in 'QKVM':
                P(dma_m0(t, c >> 2)); P(dma_ins(t, c), tag=f'w{c}')
        for c in range(7):
            if c in (0, 4): P(dma_m0('G0', c >> 2))
            P(dma_ins('G0', c), tag='G0')
        s.stamp('xlanded')
        valu(6)
        P(f'''v_readfirstlane_b32 {sNON}, v131
            v_permlane32_swap_b32 v254, v255
            s_mul_i32 {sNON}, {sNON}, 0x9e3779b1
            s_add_u32 {sNON}, {sNON}, 0x7f4a7c15''')
        P.wait_tag('w0', 'w1'); P('s_barrier')

    def reads1(s, n):
        m = s.ml[n]; rg = 4 * (n % 6)
        if m['t'] is None: return []
        if m['t'] == 'M':
            R = m['s'] >> 1; imm = (14 * (R & 1) + (R >> 1)) * 1024 + (m['s'] & 1) * 512
            return [f'ds_read_b64_tr_b16 a[{rg}:{rg+1}], v5 offset:{imm}', f'ds_read_b64_tr_b16 a[{rg+2}:{rg+3}], v6 offset:{imm}']
        return tr_pair(rg, 'a', blk_addr(m['t'], m['s']), NAT, 256)
    def mtext(s, n):
        m = s.ml[n]
        if m['t'] is None: return m['text']
        acc = vr(m['acc'], 16); w = ar(4 * (n % 6)); x = vr(16 + 4 * m['s'])
        a, b = (x, w) if m['t'] == 'V' else (w, x)
        return f'{MF} {acc}, {a}, {b}, {0 if m["s"] == 0 else acc}'
    def norm(s, ks):
        S = s.S
        for r in range(4):
            j = 4 * ks + r; x = 16 + j
            if j < 56:
                sp = s.spare(j)
                S.push(f'v_fma_f32 v{sp}, v{sp}, v9, v10\nv_fma_f32 v{x}, v{x}, v9, v10\nv_cvt_pk_bf16_f32 v{x}, v{sp}, v{x}', key='norm')
            else:
                t = 248 + 2 * (j & 1)
                S.push(f'''v_lshlrev_b32 v{t}, 16, v{x}
                    v_and_b32 v{t+1}, 0xffff0000, v{x}
                    v_fma_f32 v{t}, v{t}, v9, v10
                    v_fma_f32 v{t+1}, v{t+1}, v9, v10
                    v_cvt_pk_bf16_f32 v{x}, v{t}, v{t+1}''', key='norm')
    def gate(s, acc, n, delay):
        for r in range(0, n, 2):
            t = 220 + (r & 2); g = acc + r
            s.S.push(f'''v_exp_f32 v{t}, -v{g}
                v_exp_f32 v{t+1}, -v{g+1}
                v_fma_f32 v{t}, v{t}, {sC1}, {sC1}
                v_fma_f32 v{t+1}, v{t+1}, {sC1}, {sC1}
                v_rcp_f32 v{t}, v{t}
                v_rcp_f32 v{t+1}, v{t+1}
                v_mul_f32 v{g}, v{g}, v{t}
                v_mul_f32 v{g+1}, v{g+1}, v{t+1}''', delay=delay, key='gate')
    def hmul(s, g, u, n, dst, sl, delay):
        S = s.S
        for r in range(0, n, 2):
            S.push(f'''v_mul_f32 v{g+r}, v{g+r}, v{u+r}
                v_mul_f32 v{g+r+1}, v{g+r+1}, v{u+r+1}
                v_cvt_pk_bf16_f32 v{dst + r // 2}, v{g+r}, v{g+r+1}''', delay=delay, key='hmul', prio=1)
            if r % 8 == 6:
                k = sl + r // 8
                S.push(f'buffer_store_dwordx4 {vr(dst + 4 * (r // 8))}, v1, {WS}, {sHst if k < 4 else sHst2} offen offset:{1024 * (k & 3)} sc1',
                       delay=delay, tag='hst', key='hst', prio=2)
    def barrier(s, keys, tags):
        s.S.force_key(*keys); s.P.wait_tag(*tags); s.P('s_barrier')

    def phase1(s):
        P, S = s.P, s.S
        ml = s.ml = []
        for ks in range(28):
            for t, a in (('Q', A0), ('K', A1), ('V', A2), ('M', A3)): ml.append(dict(t=t, s=ks, acc=a))
        for t, a in (('G0', A4), ('U0', A1), ('G1', A2), ('U1', A0), ('G2', A3), ('U2', A1)):
            for ks in range(28):
                ml.append(dict(t=t, s=ks, acc=a))
                if t == 'U0' and ks == s.opt.get('sown', 11):
                    ml.append(dict(t=None, text=f'{MF} v[232:247], v[208:211], v[224:227], 0'))
                    ml.append(dict(t=None, text=f'{MF} v[232:247], v[212:215], v[228:231], v[232:247]', sown=1))
        ix = {(m['t'], m['s']): n for n, m in enumerate(ml) if m['t']}
        N = len(ml)
        P.mark('stats')
        for n in range(4):
            for l in s.reads1(n): P(l)
        P(f'''v_add_f32 v254, v254, v255
            v_mov_b32 v255, v254
            s_mov_b32 {sT2}, {fb(1 / 448)}
            s_mov_b32 {sT3}, {fb(1e-5)}
            v_permlane32_swap_b32 v254, v255
            v_mul_f32 v254, {sT2}, v254
            v_mul_f32 v255, {sT2}, v255
            v_fma_f32 v255, -v254, v254, v255
            v_max_f32 v255, 0, v255
            v_add_f32 v255, {sT3}, v255
            v_rsq_f32 v255, v255
            v_mov_b32 v12, {sNON}
            v_mul_f32 v9, {fb(LOG2E)}, v255
            v_mul_f32 v10, v9, v254
            v_sub_f32 v10, 0, v10''')
        for ks in range(28): s.norm(ks)
        S.push('v_min_u32 v11, 1, v1\nv_lshlrev_b32 v11, 31, v11', key='misc', delay=100)
        S.force_for(s.mtext(0))
        s.stamp('p1start')
        P.mark('pass1')
        pre = {}
        post = {}
        def at(d, n, f): d.setdefault(n, []).append(f)
        at(pre, ix['Q', 8] - 4, lambda: s.barrier((), ('w2', 'w3', 'w4')))
        def b0c():
            s.barrier((), ('w5', 'w6', 'G0')); s.push_tile('U0'); s.push_tile('G1')
        at(pre, ix['Q', 20] - 4, b0c)
        def epi_kvq():
            for r in range(8): S.push(f'v_cvt_pk_bf16_f32 v{208+r}, v{A1+2*r}, v{A1+2*r+1}', key='k', prio=1)
            S.push(f'v_cndmask_b32 v214, v214, v15, {HIM}\nv_cndmask_b32 v215, v215, 0, {HIM}', key='k', prio=1)
            for a in range(2):
                S.push(f'buffer_store_dwordx4 {vr(208+4*a)}, v1, {WS}, {sKVst} offen offset:{1024*a} sc1', tag='kv', key='kv', prio=2)
            for r in range(8):
                S.push(f'v_cvt_pk_bf16_f32 v{216+r}, v{A2+2*r}, v{A2+2*r+1}\nv_cndmask_b32 v{216+r}, v{216+r}, v15, {L28}', key='v', delay=1, prio=1)
            for a in range(2):
                S.push(f'buffer_store_dwordx4 {vr(216+4*a)}, v1, {WS}, {sKVst} offen offset:{2048+1024*a} sc1', tag='kv', key='kv', prio=2)
            for r in range(8):
                S.push(f'''v_mul_f32 v{A0+2*r}, {sC0}, v{A0+2*r}
                    v_mul_f32 v{A0+2*r+1}, {sC0}, v{A0+2*r+1}
                    v_cvt_pk_bf16_f32 v{224+r}, v{A0+2*r}, v{A0+2*r+1}''', key='q')
            S.push(f'v_cndmask_b32 v230, v230, 0, {HIM}\nv_cndmask_b32 v231, v231, 0, {HIM}', key='q')
            s.gate(A3, 8, 2); s.hmul(A3, A3 + 8, 8, 216, 6, 2)
            S.push(f'''v_and_b32 v9, 12, v14
                s_lshl_b32 {sT2}, {sW}, 11
                s_add_u32 {sT2}, {sT2}, {QX}
                v_add_u32 v10, {sT2}, v1
                v_lshrrev_b32 v5, 1, v1
                v_and_b32 v5, 0x100, v5
                v_sub_u32 v5, v2, v5
                v_add_u32 v6, 57344, v5
                v_add_u32 v13, 114688, v5''', key='misc', prio=-1)
        at(post, ix['M', 27], epi_kvq)
        def b2():
            s.barrier(('U0', 'G1'), ('U0', 'G1')); s.push_tile('U1'); s.push_tile('G2')
            S.push_wait('kv', delay=s.opt.get('kvflag', 10), key='kvf')
            S.push(f'buffer_store_dword v12, v11, {WS}, {sKVfl} offen sc1', key='kvf', prio=2)
        at(pre, ix['G0', 24], b2)
        at(post, ix['G0', 27], lambda: s.gate(A4, 16, 2))
        def sown():
            S.push('''v_max3_f32 v232, v232, v233, v234
                v_max3_f32 v235, v235, v236, v237
                v_max3_f32 v238, v238, v239, v240
                v_max3_f32 v241, v241, v242, v243
                v_max3_f32 v244, v244, v245, v246
                v_max3_f32 v232, v232, v235, v238
                v_max3_f32 v241, v241, v244, v247
                v_max_f32 v232, v232, v241
                v_mov_b32 v233, v232''', delay=2, key='qw', prio=1)
            S.push('v_permlane32_swap_b32 v232, v233', delay=5, key='qw', prio=1)
            S.push(f'''v_max_f32 v232, v232, v233
                v_cvt_pk_bf16_f32 v232, -v232, 0
                v_cndmask_b32 v230, v230, v232, {HIM}''', delay=5, key='qw', prio=1)
            S.push('ds_write_b128 v10, v[224:227]\nds_write_b128 v10, v[228:231] offset:1024', tag='qw', key='qw', prio=2)
        at(post, [n for n, m in enumerate(ml) if m.get('sown')][0], sown)
        at(post, ix['U0', 27], lambda: s.hmul(A4, A1, 16, 248, 0, 2))
        def b3():
            s.barrier(('U1', 'G2', 'qw', 'kvf'), ('U1', 'G2', 'qw')); s.push_tile('U2'); s.push_tile('D0')
            for u in range(4):
                S.push(f'''s_add_u32 {sT2}, {sW}, {1 + u}
                    s_and_b32 {sT2}, {sT2}, 3
                    s_lshl_b32 {sT2}, {sT2}, 11
                    s_add_u32 {sT2}, {sT2}, {QX}
                    v_add_u32 v{240 + u}, {sT2}, v1''', key='qr', prio=-1)
                S.push(f'ds_read_b128 {ar(96 + 8 * u)}, v{240 + u}\nds_read_b128 {ar(100 + 8 * u)}, v{240 + u} offset:1024', key='qr', prio=2)
        at(pre, ix['G1', 24], b3)
        at(post, ix['G1', 27], lambda: s.gate(A2, 16, 2))
        at(post, ix['U1', 27], lambda: s.hmul(A2, A0, 16, 248, 2, 2))
        def kvpoll():
            S.force_key('qr')
            S.push(f'buffer_load_dword v244, v14, {WS}, {sKVpl} offen sc1', key='kvp', prio=2)
            if s.stop != 'p1':
                import gen2
                gen2.late_setup(s)
        at(post, ix['U1', s.opt.get('kvpoll', 26)], kvpoll)
        def b4():
            S.force_key('kvp'); P(s.check('KV', 244, 14, sKVpl))
            s.barrier(('U2',), ('U2',))
            for kt in range(3):
                for pc in range(4):
                    S.push(f'buffer_load_dwordx4 {ar(32 + 16 * kt + 4 * pc)}, v1, {WS}, {sKVld} offen offset:{1024 * pc} sc1', key='kvl', prio=2)
                S.push(f's_add_u32 {sKVld}, {sKVld}, 4096', key='kvl', prio=2)
            for t in ('D1', 'D2', 'D3'): s.push_tile(t)
        at(pre, ix['G2', 24], b4)
        at(post, ix['G2', 27], lambda: s.gate(A3, 16, 2))
        for n in range(N):
            m = ml[n]
            if m['t'] in ('G0', 'U0', 'G1', 'U1', 'G2', 'U2') and m['s'] == 0:
                P.mark(m['t'])
                if m['t'] in ('G0', 'G1', 'G2'): s.stamp(m['t'])
            S.force_for(s.mtext(n))
            P(s.mtext(n))
            if n + 1 < N and ml[n + 1]['t']: P.need(ar(4 * ((n + 1) % 6)))
            for f in pre.get(n, []): f()
            if n + 4 < N:
                for l in s.reads1(n + 4): P(l)
            for f in post.get(n, []): f()
            bud = s.opt.get('bud', 16) + (8 if (n + 4 >= N or ml[n + 4]['t'] is None) else 0)
            used = S.fill(bud, ('vm', 'ds', 'fence'), maxn=s.opt.get('maxmem', 1))
            if n + 2 < N: used += S.force_for(s.mtext(n + 2))
            used += S.fill(bud - used, ('valu', 'salu'))
            S.now += 1

    def finish(s):
        P = s.P
        s.S.flush()
        if s.prof:
            s.stamp('end')
            P(f'''s_lshl2_add_u32 {sT0}, s2, {sW}
                s_lshl_b32 {sT0}, {sT0}, 8
                s_add_u32 {sT0}, {sT0}, {PROF}
                v_lshrrev_b32 v1, 2, v1
                buffer_store_dword v0, v1, {WS}, {sT0} offen''')
        P('s_waitcnt vmcnt(0)\nEND:\ns_endpgm')
        for t in s.tail:
            P.reset(); P(t)

    def build(s, verbose=0):
        s.prologue(); s.P.mark('xphase'); s.xphase(); s.phase1()
        if s.stop == 'p1':
            s.hmul(A3, A1, 16, 248, 4, 0)
        else:
            import gen2
            gen2.phase2(s)
        s.finish()
        s.P.pass_waits(); s.P.pass_nops(verbose)
        if verbose: s.P.estimate()
        return s.P.text()

def wrap(body, name=NAME + '_kernel'):
    ref = open(os.path.join(os.path.dirname(os.path.abspath(__file__)), '..', 'cdna_kernels', NAME + '.s.ref')).read()
    head = ref[:ref.index('; @launch')]
    return (head + '; @launch grid=(256,1,1) block=(256,1,1) lds=163840\n.amdgcn_target "amdgcn-amd-amdhsa--gfx950"\n.text\n'
            f'.globl {name}\n.p2align 8\n.type {name},@function\n{name}:\n' + body +
            f'''.section .rodata,"a"
.p2align 6
.amdhsa_kernel {name}
  .amdhsa_next_free_vgpr 512
  .amdhsa_next_free_sgpr 102
  .amdhsa_accum_offset 256
  .amdhsa_group_segment_fixed_size 0
  .amdhsa_kernarg_size 80
  .amdhsa_user_sgpr_count 2
  .amdhsa_user_sgpr_kernarg_segment_ptr 1
  .amdhsa_system_sgpr_workgroup_id_x 1
.end_amdhsa_kernel
''')

if __name__ == '__main__':
    import argparse, json
    ap = argparse.ArgumentParser()
    ap.add_argument('-o', default=None); ap.add_argument('--stop', default=None); ap.add_argument('--prof', action='store_true')
    ap.add_argument('--opt', default='{}'); ap.add_argument('-v', type=int, default=3)
    a = ap.parse_args()
    g = Gen(stop=a.stop, prof=a.prof, **json.loads(a.opt))
    txt = wrap(g.build(a.v))
    out = a.o or os.path.join(os.path.dirname(os.path.abspath(__file__)), '..', 'cdna_kernels', NAME + '.s')
    open(out, 'w').write(txt)
    if a.prof: open(out + '.stamps', 'w').write(json.dumps(g.stamps))
    print('wrote', out, len(txt), 'bytes')
```

```python
import sys, os, struct, math
sys.path.insert(0, os.path.dirname(os.path.abspath(__file__)))
from asmlib import Prog
from sched import Sched

NAME = 'recurrent_scan__mha_block__swiglu_ffn__prompt'
def fb(x): return '0x%08x' % struct.unpack('<I', struct.pack('<f', x))[0]
LOG2E = 1.4426950408889634; LN2 = 0.6931471805599453
KVF, HF, PF, FF = 0x1000, 0x2000, 0x3000, 0x4000
KV, HB, PART, OB, PROF, WS_SZ = 0x10000, 0x410000, 0xB10000, 0x1B10000, 0x1F00000, 0x2000000
SLOT = 28672; QX = 143360; WD3H = 151552; MRG = 114688
X, QKV, WO, G, U, WD, OUT, WS, MS = [f's[{b}:{b+3}]' for b in (4, 8, 12, 16, 20, 24, 28, 32, 36)]
sW, sH, sI, sKQ, sNQ, sWB, sNON, sCNT = [f's{i}' for i in range(40, 48)]
T2688, T3584, T896 = 48, 54, 60
(sKVst, sKVfl, sKVpl, sKVld, sHst, sHst2, sHfl, sHpl, sHld, sPst, sPfl, sPpl, sPld, sOst, sOfl, sOpl, sOld, sOld2,
 s14336) = [f's{i}' for i in range(66, 85)]
sT0, sT1, sT2, sT3 = 's85', 's86', 's87', 's88'
sW3, sC0, sC1, sWo = 's89', 's90', 's91', 's92'
HIM, L28 = 's[94:95]', 's[96:97]'
SPIN_MAX = 200000
def vr(b, n=4): return f'v[{b}:{b+n-1}]'
def ar(b, n=4): return f'a[{b}:{b+n-1}]'
A0, A1, A2, A3, A4 = 128, 144, 160, 176, 192
MF = 'v_mfma_f32_32x32x16_bf16'

TL = dict(
    Q=(0, 4096, 0, QKV, 11, T2688), K=(SLOT, SLOT + 4096, 896, QKV, 11, T2688),
    V=(2 * SLOT, 2 * SLOT + 4096, 0, QKV, 12, T2688), M=(3 * SLOT, 3 * SLOT + 4096, 0, MS, 13, T3584),
    G0=(4 * SLOT, 4 * SLOT + 4096, 0, G, 7, T3584), U0=(0, 2 * SLOT, 0, U, 7, T3584),
    G1=(SLOT, 3 * SLOT, 64, G, 7, T3584), U1=(2 * SLOT + 3072, 4096, 64, U, 7, T3584),
    G2=(3 * SLOT + 3072, SLOT + 4096, 128, G, 7, T3584), U2=(4 * SLOT, 4 * SLOT + 4096, 128, U, 7, T3584),
    D0=(0, 2 * SLOT, 0, WD, 8, T896), D1=(SLOT, 3 * SLOT, 56, WD, 8, T896),
    D2=(2 * SLOT + 3072, 4096, 112, WD, 8, T896), D3=(3 * SLOT + 3072, WD3H, 168, WD, 8, T896))

def dma_m0(t, grp):
    lo, hi, co = TL[t][:3]
    if t == 'D3' and grp == 1: return f's_add_u32 m0, {sW3}, {hi - co}'
    return f's_add_u32 m0, {sWB}, {(lo, hi)[grp] - co}'
def dma_ins(t, c):
    lo, hi, co, srd, v, tb = TL[t]
    so = '0' if c == 0 else f's{tb + c - 1}'
    return f'buffer_load_dwordx4 v{v}, {srd}, {so} offen offset:{1024 * (c & 3) + co} lds'
def blk_addr(t, s):
    lo, hi = TL[t][:2]; c = s >> 2
    ws = 3072 if (t == 'D3' and c >= 4) else 7168
    return (lo if c < 4 else hi) + ws * (s & 3) + 1024 * (c & 3)
def tr_pair(dst, kind, addr, bases, second):
    for b, reg in bases:
        if 0 <= addr - b and addr - b + second <= 65535:
            return [f'ds_read_b64_tr_b16 {kind}[{dst}:{dst+1}], v{reg} offset:{addr - b}',
                    f'ds_read_b64_tr_b16 {kind}[{dst+2}:{dst+3}], v{reg} offset:{addr - b + second}']
    raise ValueError(addr)
NAT = ((0, 2), (57344, 3), (114688, 4)); DDR = ((0, 5), (57344, 6), (114688, 13))

class Gen:
    def __init__(s, stop=None, prof=False, **opt):
        s.P = Prog(); s.S = Sched(s.P); s.stop = stop; s.prof = prof; s.tail = []; s.nst = 0; s.opt = opt
        s.stamps = []
    def stamp(s, name):
        cal = s.opt.get('cal')
        if cal and cal[1] == name: s.P('s_memrealtime s[100:101]\ns_waitcnt lgkmcnt(0)\ns_mov_b32 s93, s100')
        if not s.prof: return
        s.P(f's_memtime s[100:101]\ns_waitcnt lgkmcnt(0)\nv_writelane_b32 v0, s100, {s.nst}')
        s.stamps.append(name); s.nst += 1
    def check(s, name, vreg, voff, sbase):
        s.tail.append(f'''SPIN_{name}:
            s_mov_b32 {sCNT}, 0
            SPINL_{name}:
            buffer_load_dword v{vreg}, v{voff}, {WS}, {sbase} offen sc1
            s_waitcnt vmcnt(0)
            v_cmp_ne_u32 vcc, {sNON}, v{vreg}
            s_cbranch_vccz RET_{name}
            s_add_u32 {sCNT}, {sCNT}, 1
            s_cmp_lt_u32 {sCNT}, {SPIN_MAX}
            s_cbranch_scc1 SPINL_{name}
            s_branch RET_{name}''')
        return f'v_cmp_ne_u32 vcc, {sNON}, v{vreg}\ns_cbranch_vccnz SPIN_{name}\nRET_{name}:'
    def push_tile(s, t, delay=0, prio=2):
        S = s.S
        for c in range(7):
            if c in (0, 4): S.push(dma_m0(t, c >> 2), delay=delay, key=t, prio=prio)
            S.push(dma_ins(t, c), delay=delay, tag=t, key=t, prio=prio)

    def prologue(s):
        P = s.P
        P('s_cmp_ge_u32 s2, 0x100\ns_cbranch_scc1 END')
        if s.prof: P('s_memtime s[98:99]')
        if s.opt.get('cal'): P('s_memrealtime s[98:99]')
        for r, o in ((4, 0), (32, 72), (8, 8), (16, 32), (20, 40), (24, 48), (12, 16), (28, 56)):
            P(f's_load_dwordx2 s[{r}:{r+1}], s[0:1], {o}')
        P(f'''v_lshrrev_b32 v1, 6, v0
            v_and_b32 v0, 63, v0
            s_and_b32 {sKQ}, s2, 3
            v_readfirstlane_b32 {sW}, v1
            s_bfe_u32 {sNQ}, s2, 0x20003
            s_lshr_b32 {sI}, s2, 5
            s_and_b32 {sT0}, s2, 4
            s_lshl1_add_u32 {sI}, {sT0}, {sI}
            s_lshl2_add_u32 {sH}, {sKQ}, {sNQ}
            s_lshl2_add_u32 {sT1}, {sI}, {sW}
            s_mul_i32 {sWB}, {sW}, 7168
            s_mul_i32 {sT2}, {sT1}, {32 * 896}
            v_lshrrev_b32 v128, 3, v0
            v_and_b32 v129, 7, v0
            v_lshrrev_b32 v130, 4, v0
            v_xor_b32 v129, v129, v130
            v_mul_u32_u24 v128, 896, v128
            v_lshl_add_u32 v128, v129, 4, v128
            v_add_u32 v248, {sT2}, v128
            v_xor_b32 v249, 64, v248
            v_add_u32 v249, 7168, v249
            s_mov_b32 s6, 1835008
            s_mov_b32 s7, 0x20000
            s_mov_b32 {s14336}, 14336
            s_mov_b32 s34, {WS_SZ}
            s_mov_b32 s35, 0x20000''')
        sal = []
        for b, n in ((8, 1204224), (16, 1605632), (20, 1605632), (24, 1605632), (12, 401408), (28, 1835008), (36, 1605632)):
            sal += [f's_mov_b32 s{b+2}, {n}', f's_mov_b32 s{b+3}, 0x20000']
        for tb, st in ((T2688, 2688), (T3584, 3584), (T896, 896)):
            sal += [f's_mov_b32 s{tb + c - 1}, {64 * c * st - 1024 * (c & 3)}' for c in range(1, 7)]
        P('s_waitcnt lgkmcnt(0)')
        k = 0
        for c in range(7):
            for rg in range(4):
                P(f's_add_u32 m0, {sWB}, {rg * SLOT + 896 * c}')
                P(sal[k]); k += 1
                P(f'buffer_load_dwordx4 v{248 + (rg & 1)}, {X}, {s14336 if rg >= 2 else 0} offen offset:{128 * c} lds', tag=f'x{c}')
        P('buffer_load_dword v131, off, %s, 0 sc1' % WS, tag='non')
        for l in sal[k:]: P(l)
        P(f'''s_bitcmp1_b32 {sW}, 0
            s_cselect_b32 s36, s20, s16
            s_cselect_b32 s37, s21, s17
            s_lshl_b32 {sT0}, {sH}, 6
            s_add_u32 {sT2}, {sT0}, {sT1}
            s_lshl_b32 {sKVst}, {sT2}, 12
            s_add_u32 {sKVst}, {sKVst}, {KV}
            s_lshl2_add_u32 {sKVfl}, {sT2}, {KVF}
            s_lshl4_add_u32 {sT2}, {sW}, {sT0}
            s_lshl2_add_u32 {sKVpl}, {sT2}, {KVF}
            s_lshl_b32 {sKVld}, {sT2}, 12
            s_add_u32 {sKVld}, {sKVld}, {KV}
            s_lshl4_add_u32 {sT2}, {sT1}, {sH}
            s_mul_i32 {sHst}, {sT2}, 7168
            s_add_u32 {sHst}, {sHst}, {HB}
            s_add_u32 {sHst2}, {sHst}, 4096
            s_lshl2_add_u32 {sHfl}, {sT2}, {HF}
            s_lshl2_add_u32 {sOfl}, {sT2}, {FF}
            s_lshl_b32 {sOst}, {sT2}, 11
            s_add_u32 {sOst}, {sOst}, {OB}
            s_sub_u32 {sT2}, {sT2}, {sNQ}
            s_lshl2_add_u32 {sHpl}, {sT2}, {HF}
            s_mul_i32 {sHld}, {sT2}, 7168
            s_add_u32 {sHld}, {sHld}, {HB}
            s_lshl2_add_u32 {sT2}, {sT1}, {sNQ}
            s_lshl2_add_u32 {sT3}, {sT2}, {sKQ}
            s_lshl2_add_u32 {sPfl}, {sT3}, {PF}
            s_lshl4_add_u32 {sT3}, {sT2}, {sKQ}
            s_lshl_b32 {sPst}, {sT3}, 12
            s_add_u32 {sPst}, {sPst}, {PART}
            s_lshl2_add_u32 {sT0}, {sI}, {sKQ}
            s_lshl2_add_u32 {sT2}, {sT0}, {sNQ}
            s_lshl4_add_u32 {sPpl}, {sT2}, {PF}
            s_lshl2_add_u32 {sT2}, {sT2}, {sW}
            s_lshl_b32 {sPld}, {sT2}, 14
            s_add_u32 {sPld}, {sPld}, {PART}
            s_lshl2_add_u32 {sT2}, {sT0}, {sW}
            s_lshl4_add_u32 {sOpl}, {sT2}, {FF}
            s_lshl_b32 {sOld}, {sT2}, 13
            s_add_u32 {sOld}, {sOld}, {OB}
            s_add_u32 {sOld2}, {sOld}, 4096
            s_mul_i32 {sW3}, {sW}, 3072
            s_mov_b32 s94, 0
            s_mov_b32 s95, -1
            s_mov_b32 s96, 0x10000000
            s_mov_b32 s97, 0x10000000''')
        P(f'''v_lshlrev_b32 v1, 4, v0
            v_lshrrev_b32 v128, 5, v0
            v_bfe_u32 v129, v0, 2, 2
            v_lshl_add_u32 v129, v128, 3, v129
            v_bfe_u32 v130, v0, 4, 1
            v_and_b32 v132, 3, v0
            v_lshlrev_b32 v133, 3, v132
            v_lshl_add_u32 v2, v129, 6, v133
            v_lshl_add_u32 v2, v130, 5, v2
            v_add_u32 v3, 57344, v2
            v_add_u32 v4, 114688, v2
            v_lshl_add_u32 v5, v129, 5, v133
            v_add_u32 v5, {3 * SLOT}, v5
            v_add_u32 v6, 128, v5
            v_mul_u32_u24 v134, 7296, v130
            v_add_u32 v5, v134, v5
            v_mul_u32_u24 v134, 7040, v130
            v_add_u32 v6, v134, v6
            v_lshrrev_b32 v134, 2, v0
            s_lshl_b32 {sT2}, {sW}, 4
            v_add_u32 v134, {sT2}, v134
            v_lshlrev_b32 v135, 4, v132
            s_mul_i32 {sT2}, {sH}, 56
            v_mul_u32_u24 v11, 2688, v134
            v_add3_u32 v11, v11, v135, {sT2}
            v_add_u32 v12, 1792, v11
            s_mul_i32 {sT2}, {sH}, 224
            v_mul_u32_u24 v7, 3584, v134
            v_add3_u32 v7, v7, v135, {sT2}
            s_mul_i32 {sT3}, {sKQ}, {448 * 896}
            s_mul_i32 {sC0}, {sNQ}, 224
            s_add_u32 {sT3}, {sT3}, {sC0}
            v_mul_u32_u24 v8, 896, v134
            v_add3_u32 v8, v8, v135, {sT3}
            s_and_b32 {sT3}, {sW}, 1
            s_lshl_b32 {sT3}, {sT3}, 2
            v_lshrrev_b32 v134, 1, v0
            v_xor_b32 v134, {sT3}, v134
            s_lshr_b32 {sT3}, {sW}, 1
            s_lshl_b32 {sT3}, {sT3}, 5
            v_add_u32 v134, {sT3}, v134
            v_and_b32 v135, 1, v0
            v_lshlrev_b32 v135, 4, v135
            s_add_u32 {sT2}, {sT2}, 192
            v_mul_u32_u24 v13, 3584, v134
            v_add3_u32 v13, v13, v135, {sT2}
            v_and_b32 v14, 15, v0
            v_lshlrev_b32 v14, 2, v14
            v_mov_b32 v15, 0x3f803f80
            v_and_b32 v134, 31, v0
            v_lshrrev_b32 v135, 3, v134
            v_mul_u32_u24 v135, {SLOT}, v135
            v_and_b32 v136, 7, v0
            v_lshl_add_u32 v135, v136, 7, v135
            v_bfe_u32 v136, v0, 1, 3
            v_xor_b32 v136, v136, v128
            v_lshl_add_u32 v135, v136, 4, v135
            v_add_u32 v250, {sWB}, v135
            v_xor_b32 v251, 32, v250
            v_xor_b32 v252, 64, v250
            v_xor_b32 v253, 0x60, v250
            v_mov_b32 v254, 0
            v_mov_b32 v255, 0
            s_mov_b32 {sC0}, {fb(LN2 / math.sqrt(28.0))}
            s_mov_b32 {sC1}, {fb(LOG2E)}''')
        if s.prof:
            P('v_mov_b32 v0, 0\nv_writelane_b32 v0, s98, 0'); s.stamps.append('t0'); s.nst = 1
        s.stamp('xissued')

    def spare(s, j): return A4 + j if j < 16 else 208 + j - 16
    def xphase(s):
        P = s.P
        def valu(c):
            for r in range(16):
                x = 16 + 16 * c + r; j = 16 * c + r
                P(f'v_dot2c_f32_bf16 v254, v{x}, v15')
                if j < 56: P(f'v_lshlrev_b32 v{s.spare(j)}, 16, v{x}')
                P(f'v_dot2c_f32_bf16 v255, v{x}, v{x}')
                if j < 56: P(f'v_and_b32 v{x}, 0xffff0000, v{x}')
        for c in range(7):
            P.wait_tag(f'x{c}')
            for q in range(4): P(f'ds_read_b128 {vr(16 + 16 * c + 4 * q)}, v{250 + q} offset:{1024 * c}')
            if c: valu(c - 1)
            P.need(vr(16 + 16 * c, 16))
            for t in 'QKVM':
                P(dma_m0(t, c >> 2)); P(dma_ins(t, c), tag=f'w{c}')
        for c in range(7):
            if c in (0, 4): P(dma_m0('G0', c >> 2))
            P(dma_ins('G0', c), tag='G0')
        s.stamp('xlanded')
        valu(6)
        P(f'''v_readfirstlane_b32 {sNON}, v131
            v_permlane32_swap_b32 v254, v255
            s_mul_i32 {sNON}, {sNON}, 0x9e3779b1
            s_add_u32 {sNON}, {sNON}, 0x7f4a7c15''')
        P.wait_tag('w0', 'w1'); P('s_barrier')

    def reads1(s, n):
        m = s.ml[n]; rg = 4 * (n % 6)
        if m['t'] is None: return []
        if m['t'] == 'M':
            R = m['s'] >> 1; imm = (14 * (R & 1) + (R >> 1)) * 1024 + (m['s'] & 1) * 512
            return [f'ds_read_b64_tr_b16 a[{rg}:{rg+1}], v5 offset:{imm}', f'ds_read_b64_tr_b16 a[{rg+2}:{rg+3}], v6 offset:{imm}']
        return tr_pair(rg, 'a', blk_addr(m['t'], m['s']), NAT, 256)
    def mtext(s, n):
        m = s.ml[n]
        if m['t'] is None: return m['text']
        acc = vr(m['acc'], 16); w = ar(4 * (n % 6)); x = vr(16 + 4 * m['s'])
        a, b = (x, w) if m['t'] == 'V' else (w, x)
        return f'{MF} {acc}, {a}, {b}, {0 if m["s"] == 0 else acc}'
    def norm(s, ks):
        S = s.S
        for r in range(4):
            j = 4 * ks + r; x = 16 + j
            if j < 56:
                sp = s.spare(j)
                S.push(f'v_fma_f32 v{sp}, v{sp}, v9, v10\nv_fma_f32 v{x}, v{x}, v9, v10\nv_cvt_pk_bf16_f32 v{x}, v{sp}, v{x}', key='norm')
            else:
                t = 248 + 2 * (j & 1)
                S.push(f'''v_lshlrev_b32 v{t}, 16, v{x}
                    v_and_b32 v{t+1}, 0xffff0000, v{x}
                    v_fma_f32 v{t}, v{t}, v9, v10
                    v_fma_f32 v{t+1}, v{t+1}, v9, v10
                    v_cvt_pk_bf16_f32 v{x}, v{t}, v{t+1}''', key='norm')
    def gate(s, acc, n, delay):
        for r in range(0, n, 2):
            t = 220 + (r & 2); g = acc + r
            s.S.push(f'''v_exp_f32 v{t}, -v{g}
                v_exp_f32 v{t+1}, -v{g+1}
                v_fma_f32 v{t}, v{t}, {sC1}, {sC1}
                v_fma_f32 v{t+1}, v{t+1}, {sC1}, {sC1}
                v_rcp_f32 v{t}, v{t}
                v_rcp_f32 v{t+1}, v{t+1}
                v_mul_f32 v{g}, v{g}, v{t}
                v_mul_f32 v{g+1}, v{g+1}, v{t+1}''', delay=delay, key='gate')
    def hmul(s, g, u, n, dst, sl, delay):
        S = s.S
        for r in range(0, n, 2):
            S.push(f'''v_mul_f32 v{g+r}, v{g+r}, v{u+r}
                v_mul_f32 v{g+r+1}, v{g+r+1}, v{u+r+1}
                v_cvt_pk_bf16_f32 v{dst + r // 2}, v{g+r}, v{g+r+1}''', delay=delay, key='hmul', prio=1)
            if r % 8 == 6:
                k = sl + r // 8
                S.push(f'buffer_store_dwordx4 {vr(dst + 4 * (r // 8))}, v1, {WS}, {sHst if k < 4 else sHst2} offen offset:{1024 * (k & 3)} sc1',
                       delay=delay, tag='hst', key='hst', prio=2)
    def barrier(s, keys, tags):
        s.S.force_key(*keys); s.P.wait_tag(*tags); s.P('s_barrier')

    def phase1(s):
        P, S = s.P, s.S
        ml = s.ml = []
        for ks in range(28):
            for t, a in (('Q', A0), ('K', A1), ('V', A2), ('M', A3)): ml.append(dict(t=t, s=ks, acc=a))
        for t, a in (('G0', A4), ('U0', A1), ('G1', A2), ('U1', A0), ('G2', A3), ('U2', A1)):
            for ks in range(28):
                ml.append(dict(t=t, s=ks, acc=a))
                if t == 'U0' and ks == s.opt.get('sown', 11):
                    ml.append(dict(t=None, text=f'{MF} v[232:247], v[208:211], v[224:227], 0'))
                    ml.append(dict(t=None, text=f'{MF} v[232:247], v[212:215], v[228:231], v[232:247]', sown=1))
        ix = {(m['t'], m['s']): n for n, m in enumerate(ml) if m['t']}
        N = len(ml)
        P.mark('stats')
        for n in range(4):
            for l in s.reads1(n): P(l)
        P(f'''v_add_f32 v254, v254, v255
            v_mov_b32 v255, v254
            s_mov_b32 {sT2}, {fb(1 / 448)}
            s_mov_b32 {sT3}, {fb(1e-5)}
            v_permlane32_swap_b32 v254, v255
            v_mul_f32 v254, {sT2}, v254
            v_mul_f32 v255, {sT2}, v255
            v_fma_f32 v255, -v254, v254, v255
            v_max_f32 v255, 0, v255
            v_add_f32 v255, {sT3}, v255
            v_rsq_f32 v255, v255
            v_mov_b32 v12, {sNON}
            v_mul_f32 v9, {fb(LOG2E)}, v255
            v_mul_f32 v10, v9, v254
            v_sub_f32 v10, 0, v10''')
        for ks in range(28): s.norm(ks)
        S.push('v_min_u32 v11, 1, v1\nv_lshlrev_b32 v11, 31, v11', key='misc', delay=100)
        S.force_for(s.mtext(0))
        s.stamp('p1start')
        P.mark('pass1')
        pre = {}
        post = {}
        def at(d, n, f): d.setdefault(n, []).append(f)
        at(pre, ix['Q', 8] - 4, lambda: s.barrier((), ('w2', 'w3', 'w4')))
        def b0c():
            s.barrier((), ('w5', 'w6', 'G0')); s.push_tile('U0'); s.push_tile('G1')
        at(pre, ix['Q', 20] - 4, b0c)
        def epi_kvq():
            for r in range(8): S.push(f'v_cvt_pk_bf16_f32 v{208+r}, v{A1+2*r}, v{A1+2*r+1}', key='k', prio=1)
            S.push(f'v_cndmask_b32 v214, v214, v15, {HIM}\nv_cndmask_b32 v215, v215, 0, {HIM}', key='k', prio=1)
            for a in range(2):
                S.push(f'buffer_store_dwordx4 {vr(208+4*a)}, v1, {WS}, {sKVst} offen offset:{1024*a} sc1', tag='kv', key='kv', prio=2)
            for r in range(8):
                S.push(f'v_cvt_pk_bf16_f32 v{216+r}, v{A2+2*r}, v{A2+2*r+1}\nv_cndmask_b32 v{216+r}, v{216+r}, v15, {L28}', key='v', delay=1, prio=1)
            for a in range(2):
                S.push(f'buffer_store_dwordx4 {vr(216+4*a)}, v1, {WS}, {sKVst} offen offset:{2048+1024*a} sc1', tag='kv', key='kv', prio=2)
            for r in range(8):
                S.push(f'''v_mul_f32 v{A0+2*r}, {sC0}, v{A0+2*r}
                    v_mul_f32 v{A0+2*r+1}, {sC0}, v{A0+2*r+1}
                    v_cvt_pk_bf16_f32 v{224+r}, v{A0+2*r}, v{A0+2*r+1}''', key='q')
            S.push(f'v_cndmask_b32 v230, v230, 0, {HIM}\nv_cndmask_b32 v231, v231, 0, {HIM}', key='q')
            s.gate(A3, 8, 2); s.hmul(A3, A3 + 8, 8, 216, 6, 2)
            S.push(f'''v_and_b32 v9, 12, v14
                s_lshl_b32 {sT2}, {sW}, 11
                s_add_u32 {sT2}, {sT2}, {QX}
                v_add_u32 v10, {sT2}, v1
                v_lshrrev_b32 v5, 1, v1
                v_and_b32 v5, 0x100, v5
                v_sub_u32 v5, v2, v5
                v_add_u32 v6, 57344, v5
                v_add_u32 v13, 114688, v5''', key='misc', prio=-1)
        at(post, ix['M', 27], epi_kvq)
        def b2():
            s.barrier(('U0', 'G1'), ('U0', 'G1')); s.push_tile('U1'); s.push_tile('G2')
            S.push_wait('kv', delay=s.opt.get('kvflag', 10), key='kvf')
            S.push(f'buffer_store_dword v12, v11, {WS}, {sKVfl} offen sc1', key='kvf', prio=2)
        at(pre, ix['G0', 24], b2)
        at(post, ix['G0', 27], lambda: s.gate(A4, 16, 2))
        def sown():
            S.push('''v_max3_f32 v232, v232, v233, v234
                v_max3_f32 v235, v235, v236, v237
                v_max3_f32 v238, v238, v239, v240
                v_max3_f32 v241, v241, v242, v243
                v_max3_f32 v244, v244, v245, v246
                v_max3_f32 v232, v232, v235, v238
                v_max3_f32 v241, v241, v244, v247
                v_max_f32 v232, v232, v241
                v_mov_b32 v233, v232''', delay=2, key='qw', prio=1)
            S.push('v_permlane32_swap_b32 v232, v233', delay=5, key='qw', prio=1)
            S.push(f'''v_max_f32 v232, v232, v233
                v_cvt_pk_bf16_f32 v232, -v232, 0
                v_cndmask_b32 v230, v230, v232, {HIM}''', delay=5, key='qw', prio=1)
            S.push('ds_write_b128 v10, v[224:227]\nds_write_b128 v10, v[228:231] offset:1024', tag='qw', key='qw', prio=2)
        at(post, [n for n, m in enumerate(ml) if m.get('sown')][0], sown)
        at(post, ix['U0', 27], lambda: s.hmul(A4, A1, 16, 248, 0, 2))
        def b3():
            s.barrier(('U1', 'G2', 'qw', 'kvf'), ('U1', 'G2', 'qw')); s.push_tile('U2'); s.push_tile('D0')
            for u in range(4):
                S.push(f'''s_add_u32 {sT2}, {sW}, {1 + u}
                    s_and_b32 {sT2}, {sT2}, 3
                    s_lshl_b32 {sT2}, {sT2}, 11
                    s_add_u32 {sT2}, {sT2}, {QX}
                    v_add_u32 v{240 + u}, {sT2}, v1''', key='qr', prio=-1)
                S.push(f'ds_read_b128 {ar(96 + 8 * u)}, v{240 + u}\nds_read_b128 {ar(100 + 8 * u)}, v{240 + u} offset:1024', key='qr', prio=2)
        at(pre, ix['G1', 24], b3)
        at(post, ix['G1', 27], lambda: s.gate(A2, 16, 2))
        at(post, ix['U1', 27], lambda: s.hmul(A2, A0, 16, 248, 2, 2))
        def kvpoll():
            S.force_key('qr')
            S.push(f'buffer_load_dword v244, v14, {WS}, {sKVpl} offen sc1', key='kvp', prio=2)
            if s.stop != 'p1':
                import gen2
                gen2.late_setup(s)
        at(post, ix['U1', s.opt.get('kvpoll', 26)], kvpoll)
        def b4():
            S.force_key('kvp'); P(s.check('KV', 244, 14, sKVpl))
            s.barrier(('U2',), ('U2',))
            for kt in range(3):
                for pc in range(4):
                    S.push(f'buffer_load_dwordx4 {ar(32 + 16 * kt + 4 * pc)}, v1, {WS}, {sKVld} offen offset:{1024 * pc} sc1', key='kvl', prio=2)
                S.push(f's_add_u32 {sKVld}, {sKVld}, 4096', key='kvl', prio=2)
            for t in ('D1', 'D2', 'D3'): s.push_tile(t)
        at(pre, ix['G2', 24], b4)
        at(post, ix['G2', 27], lambda: s.gate(A3, 16, 2))
        for n in range(N):
            m = ml[n]
            if m['t'] in ('G0', 'U0', 'G1', 'U1', 'G2', 'U2') and m['s'] == 0:
                P.mark(m['t'])
                if m['t'] in ('G0', 'G1', 'G2'): s.stamp(m['t'])
            S.force_for(s.mtext(n))
            P(s.mtext(n))
            if n + 1 < N and ml[n + 1]['t']: P.need(ar(4 * ((n + 1) % 6)))
            for f in pre.get(n, []): f()
            if n + 4 < N:
                for l in s.reads1(n + 4): P(l)
            for f in post.get(n, []): f()
            bud = s.opt.get('bud', 16) + (8 if (n + 4 >= N or ml[n + 4]['t'] is None) else 0)
            used = S.fill(bud, ('vm', 'ds', 'fence'), maxn=s.opt.get('maxmem', 1))
            if n + 2 < N: used += S.force_for(s.mtext(n + 2))
            used += S.fill(bud - used, ('valu', 'salu'))
            S.now += 1

    def finish(s):
        P = s.P
        s.S.flush()
        if s.prof:
            s.stamp('end')
            P(f'''s_lshl2_add_u32 {sT0}, s2, {sW}
                s_lshl_b32 {sT0}, {sT0}, 8
                s_add_u32 {sT0}, {sT0}, {PROF}
                v_lshrrev_b32 v1, 2, v1
                buffer_store_dword v0, v1, {WS}, {sT0} offen''')
        cal = s.opt.get('cal')
        if cal:
            P('s_waitcnt vmcnt(0)')
            if cal[1]: P(f's_sub_u32 s93, s93, s98\ns_mul_i32 s93, s93, {cal[2]}\ns_add_u32 s93, s93, {cal[0]}')
            else: P(f's_mov_b32 s93, {cal[0]}')
            P('CALL:\ns_memrealtime s[100:101]\ns_waitcnt lgkmcnt(0)\ns_sub_u32 s100, s100, s98\ns_cmp_lt_u32 s100, s93\ns_cbranch_scc1 CALL')
        P('s_waitcnt vmcnt(0)\nEND:\ns_endpgm')
        for t in s.tail:
            P.reset(); P(t)

    def build(s, verbose=0):
        s.prologue(); s.P.mark('xphase'); s.xphase(); s.phase1()
        if s.stop == 'p1':
            s.hmul(A3, A1, 16, 248, 4, 0)
        else:
            import gen2
            gen2.phase2(s)
        s.finish()
        s.P.pass_waits(); s.P.pass_nops(verbose)
        if verbose: s.P.estimate()
        return s.P.text()

def wrap(body, name=NAME + '_kernel'):
    ref = open(os.path.join(os.path.dirname(os.path.abspath(__file__)), '..', 'cdna_kernels', NAME + '.s.ref')).read()
    head = ref[:ref.index('; @launch')]
    return (head + '; @launch grid=(256,1,1) block=(256,1,1) lds=163840\n.amdgcn_target "amdgcn-amd-amdhsa--gfx950"\n.text\n'
            f'.globl {name}\n.p2align 8\n.type {name},@function\n{name}:\n' + body +
            f'''.section .rodata,"a"
.p2align 6
.amdhsa_kernel {name}
  .amdhsa_next_free_vgpr 512
  .amdhsa_next_free_sgpr 102
  .amdhsa_accum_offset 256
  .amdhsa_group_segment_fixed_size 0
  .amdhsa_kernarg_size 80
  .amdhsa_user_sgpr_count 2
  .amdhsa_user_sgpr_kernarg_segment_ptr 1
  .amdhsa_system_sgpr_workgroup_id_x 1
.end_amdhsa_kernel
''')

if __name__ == '__main__':
    import argparse, json
    ap = argparse.ArgumentParser()
    ap.add_argument('-o', default=None); ap.add_argument('--stop', default=None); ap.add_argument('--prof', action='store_true')
    ap.add_argument('--opt', default='{}'); ap.add_argument('-v', type=int, default=3)
    a = ap.parse_args()
    g = Gen(stop=a.stop, prof=a.prof, **json.loads(a.opt))
    txt = wrap(g.build(a.v))
    out = a.o or os.path.join(os.path.dirname(os.path.abspath(__file__)), '..', 'cdna_kernels', NAME + '.s')
    open(out, 'w').write(txt)
    if a.prof: open(out + '.stamps', 'w').write(json.dumps(g.stamps))
    print('wrote', out, len(txt), 'bytes')
```

```python
import sys, os, struct, math
sys.path.insert(0, os.path.dirname(os.path.abspath(__file__)))
from asmlib import Prog
from sched import Sched

NAME = 'recurrent_scan__mha_block__swiglu_ffn__prompt'
def fb(x): return '0x%08x' % struct.unpack('<I', struct.pack('<f', x))[0]
LOG2E = 1.4426950408889634; LN2 = 0.6931471805599453
KVF, HF, PF, FF = 0x1000, 0x2000, 0x3000, 0x4000
KV, HB, PART, OB, PROF, WS_SZ = 0x10000, 0x410000, 0xB10000, 0x1B10000, 0x1F00000, 0x2000000
SLOT = 28672; QX = 143360; WD3H = 151552; MRG = 114688
X, QKV, WO, G, U, WD, OUT, WS, MS = [f's[{b}:{b+3}]' for b in (4, 8, 12, 16, 20, 24, 28, 32, 36)]
sW, sH, sI, sKQ, sNQ, sWB, sNON, sCNT = [f's{i}' for i in range(40, 48)]
T2688, T3584, T896 = 48, 55, 48
(sKVst, sKVfl, sKVpl, sKVld, sHst, sHst2, sHfl, sHpl, sHld, sPst, sPfl, sPpl, sPld, sOst, sOfl, sOpl, sOld, sOld2,
 s14336) = [f's{i}' for i in range(66, 85)]
sT0, sT1, sT2, sT3 = 's85', 's86', 's87', 's88'
sW3, sC0, sC1, sWo = 's89', 's90', 's91', 's92'
HIM, L28 = 's[94:95]', 's[96:97]'
SPIN_MAX = 200000
def vr(b, n=4): return f'v[{b}:{b+n-1}]'
def ar(b, n=4): return f'a[{b}:{b+n-1}]'
A0, A1, A2, A3, A4 = 128, 144, 160, 176, 192
MF = 'v_mfma_f32_32x32x16_bf16'

TL = dict(
    Q=(0, 4096, 0, QKV, 11, T2688), K=(SLOT, SLOT + 4096, 896, QKV, 11, T2688),
    V=(2 * SLOT, 2 * SLOT + 4096, 0, QKV, 12, T2688), M=(3 * SLOT, 3 * SLOT + 4096, 0, MS, 13, T3584),
    G0=(4 * SLOT, 4 * SLOT + 4096, 0, G, 7, T3584), U0=(0, 2 * SLOT, 0, U, 7, T3584),
    G1=(SLOT, 3 * SLOT, 64, G, 7, T3584), U1=(2 * SLOT + 3072, 4096, 64, U, 7, T3584),
    G2=(3 * SLOT + 3072, SLOT + 4096, 128, G, 7, T3584), U2=(4 * SLOT, 4 * SLOT + 4096, 128, U, 7, T3584),
    D0=(0, 2 * SLOT, 0, WD, 8, T896), D1=(SLOT, 3 * SLOT, 56, WD, 8, T896),
    D2=(2 * SLOT + 3072, 4096, 112, WD, 8, T896), D3=(3 * SLOT + 3072, WD3H, 168, WD, 8, T896))

def dma_m0(t, c):
    lo, hi, co = TL[t][:3]; grp = c >> 2
    if t[0] != 'D': return f's_add_u32 m0, {sWB}, {(lo, hi)[grp] + 1024 * (c & 3) - co}'
    if t == 'D3' and grp == 1: return f's_add_u32 m0, {sW3}, {hi - co}'
    return f's_add_u32 m0, {sWB}, {(lo, hi)[grp] - co}'
def dma_ins(t, c):
    lo, hi, co, srd, v, tb = TL[t]
    if t[0] != 'D': return f'buffer_load_dwordx4 v{v}, {srd}, s{tb + c} offen offset:{co} lds'
    so = '0' if c == 0 else f's{tb + c - 1}'
    return f'buffer_load_dwordx4 v{v}, {srd}, {so} offen offset:{1024 * (c & 3) + co} lds'
def blk_addr(t, s):
    lo, hi = TL[t][:2]; c = s >> 2
    ws = 3072 if (t == 'D3' and c >= 4) else 7168
    return (lo if c < 4 else hi) + ws * (s & 3) + 1024 * (c & 3)
def tr_pair(dst, kind, addr, bases, second):
    for b, reg in bases:
        if 0 <= addr - b and addr - b + second <= 65535:
            return [f'ds_read_b64_tr_b16 {kind}[{dst}:{dst+1}], v{reg} offset:{addr - b}',
                    f'ds_read_b64_tr_b16 {kind}[{dst+2}:{dst+3}], v{reg} offset:{addr - b + second}']
    raise ValueError(addr)
NAT = ((0, 2), (57344, 3), (114688, 4)); DDR = ((0, 5), (57344, 6), (114688, 13))

class Gen:
    def __init__(s, stop=None, prof=False, **opt):
        s.P = Prog(); s.S = Sched(s.P); s.stop = stop; s.prof = prof; s.tail = []; s.nst = 0; s.opt = opt
        s.stamps = []
    def stamp(s, name):
        cal = s.opt.get('cal')
        if cal and cal[1] == name: s.P('s_memrealtime s[100:101]\ns_waitcnt lgkmcnt(0)\ns_mov_b32 s93, s100')
        if not s.prof: return
        s.P(f's_memtime s[100:101]\ns_waitcnt lgkmcnt(0)\nv_writelane_b32 v0, s100, {s.nst}')
        s.stamps.append(name); s.nst += 1
    def check(s, name, vreg, voff, sbase):
        s.tail.append(f'''SPIN_{name}:
            s_mov_b32 {sCNT}, 0
            SPINL_{name}:
            buffer_load_dword v{vreg}, v{voff}, {WS}, {sbase} offen sc1
            s_waitcnt vmcnt(0)
            v_cmp_ne_u32 vcc, {sNON}, v{vreg}
            s_cbranch_vccz RET_{name}
            s_add_u32 {sCNT}, {sCNT}, 1
            s_cmp_lt_u32 {sCNT}, {SPIN_MAX}
            s_cbranch_scc1 SPINL_{name}
            s_branch RET_{name}''')
        return f'v_cmp_ne_u32 vcc, {sNON}, v{vreg}\ns_cbranch_vccnz SPIN_{name}\nRET_{name}:'
    def push_tile(s, t, delay=0, prio=2):
        S = s.S
        for c in range(7):
            if c in (0, 4) or t[0] != 'D': S.push(dma_m0(t, c), delay=delay, key=t, prio=prio)
            S.push(dma_ins(t, c), delay=delay, tag=t, key=t, prio=prio)

    def prologue(s):
        P = s.P
        P('s_cmp_ge_u32 s2, 0x100\ns_cbranch_scc1 END')
        if s.prof: P('s_memtime s[98:99]')
        if s.opt.get('cal'): P('s_memrealtime s[98:99]')
        for r, o in ((4, 0), (32, 72), (8, 8), (16, 32), (20, 40), (24, 48), (12, 16), (28, 56)):
            P(f's_load_dwordx2 s[{r}:{r+1}], s[0:1], {o}')
        P(f'''v_lshrrev_b32 v1, 6, v0
            v_and_b32 v0, 63, v0
            s_and_b32 {sKQ}, s2, 3
            v_readfirstlane_b32 {sW}, v1
            s_bfe_u32 {sNQ}, s2, 0x20003
            s_lshr_b32 {sI}, s2, 5
            s_lshl1_add_u32 {sT0}, {sNQ}, {sI}
            s_mul_i32 s{T3584}, {sT0}, {128 * s.opt.get('rot', 1)}
            s_sub_u32 {sT0}, s{T3584}, 896
            s_cselect_b32 s{T3584}, s{T3584}, {sT0}
            s_and_b32 {sT0}, s2, 4
            s_lshl1_add_u32 {sI}, {sT0}, {sI}
            s_lshl2_add_u32 {sH}, {sKQ}, {sNQ}
            s_lshl2_add_u32 {sT1}, {sI}, {sW}
            s_mul_i32 {sWB}, {sW}, 7168
            s_mul_i32 {sT2}, {sT1}, {32 * 896}
            v_lshrrev_b32 v128, 3, v0
            v_and_b32 v129, 7, v0
            v_lshrrev_b32 v130, 4, v0
            v_xor_b32 v129, v129, v130
            v_mul_u32_u24 v128, 896, v128
            v_lshl_add_u32 v128, v129, 4, v128
            v_add_u32 v248, {sT2}, v128
            v_xor_b32 v249, 64, v248
            v_add_u32 v249, 7168, v249
            v_add_u32 v246, 14336, v248
            v_add_u32 v247, 14336, v249
            s_mov_b32 s6, 1835008
            s_mov_b32 s7, 0x20000
            s_mov_b32 s34, {WS_SZ}
            s_mov_b32 s35, 0x20000''')
        sal = []
        for b, n in ((8, 1204224), (16, 1605632), (20, 1605632), (24, 1605632), (12, 401408), (28, 1835008), (36, 1605632)):
            sal += [f's_mov_b32 s{b+2}, {n}', f's_mov_b32 s{b+3}, 0x20000']
        P('s_waitcnt lgkmcnt(0)')
        if s.prof: P('s_memtime s[90:91]\ns_memrealtime s[92:93]\ns_waitcnt lgkmcnt(0)\nv_mov_b32 v240, s90\nv_mov_b32 v241, s92')
        for c in range(7):
            n = T3584 + c + 1
            fill = [f's_add_u32 s{n}, s{n-1}, 128', f's_cmp_eq_u32 s{n}, 896\ns_cselect_b32 s{n}, 0, s{n}'] if c < 6 else ['s_nop 0'] * 2
            fill += sal[2 * c:2 * c + 2]
            for rg in range(4):
                P(f's_add_u32 m0, {sWB}, {rg * SLOT + 1024 * c}')
                P(fill[rg])
                P(f'buffer_load_dwordx4 v{(248, 249, 246, 247)[rg]}, {X}, s{T3584 + c} offen lds', tag=f'x{c}')
        if s.prof: P('s_memtime s[90:91]\ns_waitcnt lgkmcnt(0)\nv_mov_b32 v242, s90')
        P('buffer_load_dword v131, off, %s, 0 sc1' % WS, tag='non')
        for c in range(7): P(f's_mul_i32 s{T2688 + c}, s{T3584 + c}, 1344\ns_mul_i32 s{T3584 + c}, s{T3584 + c}, 1792')
        P(f'''s_bitcmp1_b32 {sW}, 0
            s_cselect_b32 s36, s20, s16
            s_cselect_b32 s37, s21, s17
            s_lshl_b32 {sT0}, {sH}, 6
            s_add_u32 {sT2}, {sT0}, {sT1}
            s_lshl_b32 {sKVst}, {sT2}, 12
            s_add_u32 {sKVst}, {sKVst}, {KV}
            s_lshl2_add_u32 {sKVfl}, {sT2}, {KVF}
            s_lshl4_add_u32 {sT2}, {sW}, {sT0}
            s_lshl2_add_u32 {sKVpl}, {sT2}, {KVF}
            s_lshl_b32 {sKVld}, {sT2}, 12
            s_add_u32 {sKVld}, {sKVld}, {KV}
            s_lshl4_add_u32 {sT2}, {sT1}, {sH}
            s_mul_i32 {sHst}, {sT2}, 7168
            s_add_u32 {sHst}, {sHst}, {HB}
            s_add_u32 {sHst2}, {sHst}, 4096
            s_lshl2_add_u32 {sHfl}, {sT2}, {HF}
            s_lshl2_add_u32 {sOfl}, {sT2}, {FF}
            s_lshl_b32 {sOst}, {sT2}, 11
            s_add_u32 {sOst}, {sOst}, {OB}
            s_sub_u32 {sT2}, {sT2}, {sNQ}
            s_lshl2_add_u32 {sHpl}, {sT2}, {HF}
            s_mul_i32 {sHld}, {sT2}, 7168
            s_add_u32 {sHld}, {sHld}, {HB}
            s_lshl2_add_u32 {sT2}, {sT1}, {sNQ}
            s_lshl2_add_u32 {sT3}, {sT2}, {sKQ}
            s_lshl2_add_u32 {sPfl}, {sT3}, {PF}
            s_lshl4_add_u32 {sT3}, {sT2}, {sKQ}
            s_lshl_b32 {sPst}, {sT3}, 12
            s_add_u32 {sPst}, {sPst}, {PART}
            s_lshl2_add_u32 {sT0}, {sI}, {sKQ}
            s_lshl2_add_u32 {sT2}, {sT0}, {sNQ}
            s_lshl4_add_u32 {sPpl}, {sT2}, {PF}
            s_lshl2_add_u32 {sT2}, {sT2}, {sW}
            s_lshl_b32 {sPld}, {sT2}, 14
            s_add_u32 {sPld}, {sPld}, {PART}
            s_lshl2_add_u32 {sT2}, {sT0}, {sW}
            s_lshl4_add_u32 {sOpl}, {sT2}, {FF}
            s_lshl_b32 {sOld}, {sT2}, 13
            s_add_u32 {sOld}, {sOld}, {OB}
            s_add_u32 {sOld2}, {sOld}, 4096
            s_mul_i32 {sW3}, {sW}, 3072
            s_mov_b32 s94, 0
            s_mov_b32 s95, -1
            s_mov_b32 s96, 0x10000000
            s_mov_b32 s97, 0x10000000''')
        P(f'''v_lshlrev_b32 v1, 4, v0
            v_lshrrev_b32 v128, 5, v0
            v_bfe_u32 v129, v0, 2, 2
            v_lshl_add_u32 v129, v128, 3, v129
            v_bfe_u32 v130, v0, 4, 1
            v_and_b32 v132, 3, v0
            v_lshlrev_b32 v133, 3, v132
            v_lshl_add_u32 v2, v129, 6, v133
            v_lshl_add_u32 v2, v130, 5, v2
            v_add_u32 v3, 57344, v2
            v_add_u32 v4, 114688, v2
            v_lshl_add_u32 v5, v129, 5, v133
            v_add_u32 v5, {3 * SLOT}, v5
            v_add_u32 v6, 128, v5
            v_mul_u32_u24 v134, 7296, v130
            v_add_u32 v5, v134, v5
            v_mul_u32_u24 v134, 7040, v130
            v_add_u32 v6, v134, v6
            v_lshrrev_b32 v134, 2, v0
            s_lshl_b32 {sT2}, {sW}, 4
            v_add_u32 v134, {sT2}, v134
            v_lshlrev_b32 v135, 4, v132
            s_mul_i32 {sT2}, {sH}, 56
            v_mul_u32_u24 v11, 2688, v134
            v_add3_u32 v11, v11, v135, {sT2}
            v_add_u32 v12, 1792, v11
            s_mul_i32 {sT2}, {sH}, 224
            v_mul_u32_u24 v7, 3584, v134
            v_add3_u32 v7, v7, v135, {sT2}
            s_mul_i32 {sT3}, {sKQ}, {448 * 896}
            s_mul_i32 {sC0}, {sNQ}, 224
            s_add_u32 {sT3}, {sT3}, {sC0}
            v_mul_u32_u24 v8, 896, v134
            v_add3_u32 v8, v8, v135, {sT3}
            s_and_b32 {sT3}, {sW}, 1
            s_lshl_b32 {sT3}, {sT3}, 2
            v_lshrrev_b32 v134, 1, v0
            v_xor_b32 v134, {sT3}, v134
            s_lshr_b32 {sT3}, {sW}, 1
            s_lshl_b32 {sT3}, {sT3}, 5
            v_add_u32 v134, {sT3}, v134
            v_and_b32 v135, 1, v0
            v_lshlrev_b32 v135, 4, v135
            s_add_u32 {sT2}, {sT2}, 192
            v_mul_u32_u24 v13, 3584, v134
            v_add3_u32 v13, v13, v135, {sT2}
            v_and_b32 v14, 15, v0
            v_lshlrev_b32 v14, 2, v14
            v_mov_b32 v15, 0x3f803f80
            v_and_b32 v134, 31, v0
            v_lshrrev_b32 v135, 3, v134
            v_mul_u32_u24 v135, {SLOT}, v135
            v_and_b32 v136, 7, v0
            v_lshl_add_u32 v135, v136, 7, v135
            v_bfe_u32 v136, v0, 1, 3
            v_xor_b32 v136, v136, v128
            v_lshl_add_u32 v135, v136, 4, v135
            v_add_u32 v250, {sWB}, v135
            v_xor_b32 v251, 32, v250
            v_xor_b32 v252, 64, v250
            v_xor_b32 v253, 0x60, v250
            s_lshr_b32 {sT2}, s2, 3
            s_lshr_b32 {sT3}, {sW}, 1
            s_lshl1_add_u32 {sT2}, {sT2}, {sT3}
            v_mul_u32_u24 v134, 37, v0
            v_lshrrev_b32 v134, 8, v134
            v_mul_u32_u24 v134, {3584 - 896}, v134
            v_lshl_add_u32 v134, v0, 7, v134
            s_mul_i32 {sT3}, {sT2}, {7 * 3584}
            s_mul_i32 s62, {sKQ}, 896
            s_add_u32 {sT3}, {sT3}, s62
            s_mul_i32 s63, {sT2}, {49 * 128}
            v_cmp_gt_u32 vcc, 49, v0
            v_add_u32 v134, {sT3}, v134
            v_bfrev_b32 v136, 1
            v_cndmask_b32 v9, v136, v134, vcc
            v_mov_b32 v254, 0
            v_mov_b32 v255, 0
            s_mov_b32 {sC0}, {fb(LN2 / math.sqrt(28.0))}
            s_mov_b32 {sC1}, {fb(LOG2E)}''')
        if s.prof:
            P('v_mov_b32 v0, 0\nv_writelane_b32 v0, s98, 0\nv_readfirstlane_b32 s98, v240\nv_readfirstlane_b32 s99, v241\nv_readfirstlane_b32 s100, v242')
            P('v_writelane_b32 v0, s98, 1\nv_writelane_b32 v0, s99, 63\nv_writelane_b32 v0, s100, 2')
            s.stamps += ['t0', 'karg', 'xdma']; s.nst = 3
        s.stamp('xissued')

    def spare(s, j): return A4 + j if j < 16 else 208 + j - 16
    def xphase(s):
        P = s.P
        def valu(c):
            for r in range(16):
                x = 16 + 16 * c + r; j = 16 * c + r
                P(f'v_dot2c_f32_bf16 v254, v{x}, v15')
                if j < 56: P(f'v_lshlrev_b32 v{s.spare(j)}, 16, v{x}')
                P(f'v_dot2c_f32_bf16 v255, v{x}, v{x}')
                if j < 56: P(f'v_and_b32 v{x}, 0xffff0000, v{x}')
        for c in range(7):
            P.wait_tag(f'x{c}')
            if s.opt.get('xst'): s.stamp(f'x{c}')
            for q in range(4): P(f'ds_read_b128 {vr(16 + 16 * c + 4 * q)}, v{250 + q} offset:{1024 * c}')
            if c: valu(c - 1)
            P.need(vr(16 + 16 * c, 16))
            for t in 'QKVM':
                P(dma_m0(t, c)); P(dma_ins(t, c), tag=f'w{c}')
        tabs = [f's_mov_b32 s{T896 + c - 1}, {64 * c * 896 - 1024 * (c & 3)}' for c in range(1, 7)] + ['s_nop 0']
        for c in range(7):
            P(dma_m0('G0', c)); P(tabs[c]); P(dma_ins('G0', c), tag='G0')
        tg = s.opt.get('tg', 1)
        for j in range(tg): P(f'buffer_load_dword a{240 + j}, v9, {MS}, 0 offen offset:{64 * j}')
        P(f'''s_mul_i32 s62, {sKQ}, 401408
            s_bitcmp1_b32 {sW}, 0
            s_cselect_b32 s36, s12, s24
            s_cselect_b32 s37, s13, s25
            s_cselect_b32 s38, s14, s26
            s_cselect_b32 s62, 0, s62
            v_lshl_add_u32 v253, v1, 3, s63
            v_bfrev_b32 v252, 1
            v_cndmask_b32 v253, v252, v253, vcc''')
        s.stamp('xlanded')
        valu(6)
        P(f'''v_readfirstlane_b32 {sNON}, v131
            v_permlane32_swap_b32 v254, v255
            s_mul_i32 {sNON}, {sNON}, 0x9e3779b1
            s_add_u32 {sNON}, {sNON}, 0x7f4a7c15''')
        P.wait_tag('w0', 'w1')
        if s.opt.get('xst'): s.stamp('w1')
        P('s_barrier')

    def reads1(s, n):
        m = s.ml[n]; rg = 4 * (n % 6)
        if m['t'] is None: return []
        if m['t'] == 'M':
            R = m['s'] >> 1; imm = (14 * (R & 1) + (R >> 1)) * 1024 + (m['s'] & 1) * 512
            return [f'ds_read_b64_tr_b16 a[{rg}:{rg+1}], v5 offset:{imm}', f'ds_read_b64_tr_b16 a[{rg+2}:{rg+3}], v6 offset:{imm}']
        return tr_pair(rg, 'a', blk_addr(m['t'], m['s']), NAT, 256)
    def mtext(s, n):
        m = s.ml[n]
        if m['t'] is None: return m['text']
        acc = vr(m['acc'], 16); w = ar(4 * (n % 6)); x = vr(16 + 4 * m['s'])
        a, b = (x, w) if m['t'] == 'V' else (w, x)
        return f'{MF} {acc}, {a}, {b}, {0 if m["s"] == 0 else acc}'
    def norm(s, ks):
        S = s.S
        for r in range(4):
            j = 4 * ks + r; x = 16 + j
            if j < 56:
                sp = s.spare(j)
                S.push(f'v_fma_f32 v{sp}, v{sp}, v9, v10\nv_fma_f32 v{x}, v{x}, v9, v10\nv_cvt_pk_bf16_f32 v{x}, v{sp}, v{x}', key='norm')
            else:
                t = 248 + 2 * (j & 1)
                S.push(f'''v_lshlrev_b32 v{t}, 16, v{x}
                    v_and_b32 v{t+1}, 0xffff0000, v{x}
                    v_fma_f32 v{t}, v{t}, v9, v10
                    v_fma_f32 v{t+1}, v{t+1}, v9, v10
                    v_cvt_pk_bf16_f32 v{x}, v{t}, v{t+1}''', key='norm')
    def gate(s, acc, n, delay):
        for r in range(0, n, 2):
            t = 220 + (r & 2); g = acc + r
            s.S.push(f'''v_exp_f32 v{t}, -v{g}
                v_exp_f32 v{t+1}, -v{g+1}
                v_fma_f32 v{t}, v{t}, {sC1}, {sC1}
                v_fma_f32 v{t+1}, v{t+1}, {sC1}, {sC1}
                v_rcp_f32 v{t}, v{t}
                v_rcp_f32 v{t+1}, v{t+1}
                v_mul_f32 v{g}, v{g}, v{t}
                v_mul_f32 v{g+1}, v{g+1}, v{t+1}''', delay=delay, key='gate')
    def hmul(s, g, u, n, dst, sl, delay):
        S = s.S
        for r in range(0, n, 2):
            S.push(f'''v_mul_f32 v{g+r}, v{g+r}, v{u+r}
                v_mul_f32 v{g+r+1}, v{g+r+1}, v{u+r+1}
                v_cvt_pk_bf16_f32 v{dst + r // 2}, v{g+r}, v{g+r+1}''', delay=delay, key='hmul', prio=1)
            if r % 8 == 6:
                k = sl + r // 8
                S.push(f'buffer_store_dwordx4 {vr(dst + 4 * (r // 8))}, v1, {WS}, {sHst if k < 4 else sHst2} offen offset:{1024 * (k & 3)} sc1',
                       delay=delay, tag='hst', key='hst', prio=2)
    def barrier(s, keys, tags):
        s.S.force_key(*keys); s.P.wait_tag(*tags); s.P('s_barrier')

    def phase1(s):
        P, S = s.P, s.S
        ml = s.ml = []
        for ks in range(28):
            for t, a in (('Q', A0), ('K', A1), ('V', A2), ('M', A3)): ml.append(dict(t=t, s=ks, acc=a))
        for t, a in (('G0', A4), ('U0', A1), ('G1', A2), ('U1', A0), ('G2', A3), ('U2', A1)):
            for ks in range(28):
                ml.append(dict(t=t, s=ks, acc=a))
                if t == 'U0' and ks == s.opt.get('sown', 11):
                    ml.append(dict(t=None, text=f'{MF} v[232:247], v[208:211], v[224:227], 0'))
                    ml.append(dict(t=None, text=f'{MF} v[232:247], v[212:215], v[228:231], v[232:247]', sown=1))
        ix = {(m['t'], m['s']): n for n, m in enumerate(ml) if m['t']}
        N = len(ml)
        P.mark('stats')
        for n in range(4):
            for l in s.reads1(n): P(l)
        P(f'''v_add_f32 v254, v254, v255
            v_mov_b32 v255, v254
            s_mov_b32 {sT2}, {fb(1 / 448)}
            s_mov_b32 {sT3}, {fb(1e-5)}
            v_permlane32_swap_b32 v254, v255
            v_mul_f32 v254, {sT2}, v254
            v_mul_f32 v255, {sT2}, v255
            v_fma_f32 v255, -v254, v254, v255
            v_max_f32 v255, 0, v255
            v_add_f32 v255, {sT3}, v255
            v_rsq_f32 v255, v255
            v_mov_b32 v12, {sNON}
            v_mul_f32 v9, {fb(LOG2E)}, v255
            v_mul_f32 v10, v9, v254
            v_sub_f32 v10, 0, v10''')
        for ks in range(28): s.norm(ks)
        S.push('v_min_u32 v11, 1, v1\nv_lshlrev_b32 v11, 31, v11', key='misc', delay=100)
        S.force_for(s.mtext(0))
        s.stamp('p1start')
        P.mark('pass1')
        pre = {}
        post = {}
        def at(d, n, f): d.setdefault(n, []).append(f)
        def b0b():
            s.barrier((), ('w2', 'w3', 'w4'))
            for j in range(s.opt.get('tg', 1)):
                S.push(f'buffer_load_dword a{242 + j}, v253, {MS}, s62 offen offset:{64 * j}', key='tch', prio=2)
        at(pre, ix['Q', 8] - 4, b0b)
        def b0c():
            s.barrier((), ('w5', 'w6', 'G0')); s.push_tile('U0'); s.push_tile('G1')
        at(pre, ix['Q', 20] - 4, b0c)
        def epi_kvq():
            for r in range(8): S.push(f'v_cvt_pk_bf16_f32 v{208+r}, v{A1+2*r}, v{A1+2*r+1}', key='k', prio=1)
            S.push(f'v_cndmask_b32 v214, v214, v15, {HIM}\nv_cndmask_b32 v215, v215, 0, {HIM}', key='k', prio=1)
            for a in range(2):
                S.push(f'buffer_store_dwordx4 {vr(208+4*a)}, v1, {WS}, {sKVst} offen offset:{1024*a} sc1', tag='kv', key='kv', prio=2)
            for r in range(8):
                S.push(f'v_cvt_pk_bf16_f32 v{216+r}, v{A2+2*r}, v{A2+2*r+1}\nv_cndmask_b32 v{216+r}, v{216+r}, v15, {L28}', key='v', delay=1, prio=1)
            for a in range(2):
                S.push(f'buffer_store_dwordx4 {vr(216+4*a)}, v1, {WS}, {sKVst} offen offset:{2048+1024*a} sc1', tag='kv', key='kv', prio=2)
            for r in range(8):
                S.push(f'''v_mul_f32 v{A0+2*r}, {sC0}, v{A0+2*r}
                    v_mul_f32 v{A0+2*r+1}, {sC0}, v{A0+2*r+1}
                    v_cvt_pk_bf16_f32 v{224+r}, v{A0+2*r}, v{A0+2*r+1}''', key='q')
            S.push(f'v_cndmask_b32 v230, v230, 0, {HIM}\nv_cndmask_b32 v231, v231, 0, {HIM}', key='q')
            s.gate(A3, 8, 2); s.hmul(A3, A3 + 8, 8, 216, 6, 2)
            S.push(f'''v_and_b32 v9, 12, v14
                s_lshl_b32 {sT2}, {sW}, 11
                s_add_u32 {sT2}, {sT2}, {QX}
                v_add_u32 v10, {sT2}, v1
                v_lshrrev_b32 v5, 1, v1
                v_and_b32 v5, 0x100, v5
                v_sub_u32 v5, v2, v5
                v_add_u32 v6, 57344, v5
                v_add_u32 v13, 114688, v5''', key='misc', prio=-1)
        at(post, ix['M', 27], epi_kvq)
        def b2():
            s.barrier(('U0', 'G1'), ('U0', 'G1')); s.push_tile('U1'); s.push_tile('G2')
            S.push_wait('kv', delay=s.opt.get('kvflag', 10), key='kvf')
            S.push(f'buffer_store_dword v12, v11, {WS}, {sKVfl} offen sc1', key='kvf', prio=2)
        at(pre, ix['G0', 24], b2)
        at(post, ix['G0', 27], lambda: s.gate(A4, 16, 2))
        def sown():
            S.push('''v_max3_f32 v232, v232, v233, v234
                v_max3_f32 v235, v235, v236, v237
                v_max3_f32 v238, v238, v239, v240
                v_max3_f32 v241, v241, v242, v243
                v_max3_f32 v244, v244, v245, v246
                v_max3_f32 v232, v232, v235, v238
                v_max3_f32 v241, v241, v244, v247
                v_max_f32 v232, v232, v241
                v_mov_b32 v233, v232''', delay=2, key='qw', prio=1)
            S.push('v_permlane32_swap_b32 v232, v233', delay=5, key='qw', prio=1)
            S.push(f'''v_max_f32 v232, v232, v233
                v_cvt_pk_bf16_f32 v232, -v232, 0
                v_cndmask_b32 v230, v230, v232, {HIM}''', delay=5, key='qw', prio=1)
            S.push('ds_write_b128 v10, v[224:227]\nds_write_b128 v10, v[228:231] offset:1024', tag='qw', key='qw', prio=2)
        at(post, [n for n, m in enumerate(ml) if m.get('sown')][0], sown)
        at(post, ix['U0', 27], lambda: s.hmul(A4, A1, 16, 248, 0, 2))
        def b3():
            s.barrier(('U1', 'G2', 'qw', 'kvf'), ('U1', 'G2', 'qw')); s.push_tile('U2'); s.push_tile('D0')
            for u in range(4):
                S.push(f'''s_add_u32 {sT2}, {sW}, {1 + u}
                    s_and_b32 {sT2}, {sT2}, 3
                    s_lshl_b32 {sT2}, {sT2}, 11
                    s_add_u32 {sT2}, {sT2}, {QX}
                    v_add_u32 v{240 + u}, {sT2}, v1''', key='qr', prio=-1)
                S.push(f'ds_read_b128 {ar(96 + 8 * u)}, v{240 + u}\nds_read_b128 {ar(100 + 8 * u)}, v{240 + u} offset:1024', key='qr', prio=2)
        at(pre, ix['G1', 24], b3)
        at(post, ix['G1', 27], lambda: s.gate(A2, 16, 2))
        at(post, ix['U1', 27], lambda: s.hmul(A2, A0, 16, 248, 2, 2))
        def kvpoll():
            S.force_key('qr')
            S.push(f'buffer_load_dword v244, v14, {WS}, {sKVpl} offen sc1', key='kvp', prio=2)
            if s.stop != 'p1':
                import gen2
                gen2.late_setup(s)
        at(post, ix['U1', s.opt.get('kvpoll', 26)], kvpoll)
        def b4():
            S.force_key('kvp'); P(s.check('KV', 244, 14, sKVpl))
            s.barrier(('U2',), ('U2',))
            for kt in range(3):
                for pc in range(4):
                    S.push(f'buffer_load_dwordx4 {ar(32 + 16 * kt + 4 * pc)}, v1, {WS}, {sKVld} offen offset:{1024 * pc} sc1', key='kvl', prio=2)
                S.push(f's_add_u32 {sKVld}, {sKVld}, 4096', key='kvl', prio=2)
            for t in ('D1', 'D2', 'D3'): s.push_tile(t)
        at(pre, ix['G2', 24], b4)
        at(post, ix['G2', 27], lambda: s.gate(A3, 16, 2))
        for n in range(N):
            m = ml[n]
            if m['t'] in ('G0', 'U0', 'G1', 'U1', 'G2', 'U2') and m['s'] == 0:
                P.mark(m['t'])
                if m['t'] in ('G0', 'G1', 'G2'): s.stamp(m['t'])
            S.force_for(s.mtext(n))
            P(s.mtext(n))
            if n + 1 < N and ml[n + 1]['t']: P.need(ar(4 * ((n + 1) % 6)))
            for f in pre.get(n, []): f()
            if n + 4 < N:
                for l in s.reads1(n + 4): P(l)
            for f in post.get(n, []): f()
            bud = s.opt.get('bud', 16) + (8 if (n + 4 >= N or ml[n + 4]['t'] is None) else 0)
            used = S.fill(bud, ('vm', 'ds', 'fence'), maxn=s.opt.get('maxmem', 1))
            if n + 2 < N: used += S.force_for(s.mtext(n + 2))
            used += S.fill(bud - used, ('valu', 'salu'))
            S.now += 1

    def finish(s):
        P = s.P
        s.S.flush()
        if s.prof:
            s.stamp('end')
            P('s_memrealtime s[100:101]\ns_waitcnt lgkmcnt(0)\nv_writelane_b32 v0, s100, 62')
            P(f'''s_lshl2_add_u32 {sT0}, s2, {sW}
                s_lshl_b32 {sT0}, {sT0}, 8
                s_add_u32 {sT0}, {sT0}, {PROF}
                v_lshrrev_b32 v1, 2, v1
                buffer_store_dword v0, v1, {WS}, {sT0} offen''')
        cal = s.opt.get('cal')
        if cal:
            P('s_waitcnt vmcnt(0)')
            if cal[1]: P(f's_sub_u32 s93, s93, s98\ns_mul_i32 s93, s93, {cal[2]}\ns_add_u32 s93, s93, {cal[0]}')
            else: P(f's_mov_b32 s93, {cal[0]}')
            P('CALL:\ns_memrealtime s[100:101]\ns_waitcnt lgkmcnt(0)\ns_sub_u32 s100, s100, s98\ns_cmp_lt_u32 s100, s93\ns_cbranch_scc1 CALL')
        P('s_waitcnt vmcnt(0)\nEND:\ns_endpgm')
        for t in s.tail:
            P.reset(); P(t)

    def build(s, verbose=0):
        s.prologue(); s.P.mark('xphase'); s.xphase(); s.phase1()
        if s.stop == 'p1':
            s.hmul(A3, A1, 16, 248, 4, 0)
        else:
            import gen2
            gen2.phase2(s)
        s.finish()
        s.P.pass_waits(); s.P.pass_nops(verbose)
        if verbose: s.P.estimate()
        return s.P.text()

def wrap(body, name=NAME + '_kernel'):
    ref = open(os.path.join(os.path.dirname(os.path.abspath(__file__)), '..', 'cdna_kernels', NAME + '.s.ref')).read()
    head = ref[:ref.index('; @launch')]
    return (head + '; @launch grid=(256,1,1) block=(256,1,1) lds=163840\n.amdgcn_target "amdgcn-amd-amdhsa--gfx950"\n.text\n'
            f'.globl {name}\n.p2align 8\n.type {name},@function\n{name}:\n' + body +
            f'''.section .rodata,"a"
.p2align 6
.amdhsa_kernel {name}
  .amdhsa_next_free_vgpr 512
  .amdhsa_next_free_sgpr 102
  .amdhsa_accum_offset 256
  .amdhsa_group_segment_fixed_size 0
  .amdhsa_kernarg_size 80
  .amdhsa_user_sgpr_count 2
  .amdhsa_user_sgpr_kernarg_segment_ptr 1
  .amdhsa_system_sgpr_workgroup_id_x 1
.end_amdhsa_kernel
''')

if __name__ == '__main__':
    import argparse, json
    ap = argparse.ArgumentParser()
    ap.add_argument('-o', default=None); ap.add_argument('--stop', default=None); ap.add_argument('--prof', action='store_true')
    ap.add_argument('--opt', default='{}'); ap.add_argument('-v', type=int, default=3)
    a = ap.parse_args()
    g = Gen(stop=a.stop, prof=a.prof, **json.loads(a.opt))
    txt = wrap(g.build(a.v))
    out = a.o or os.path.join(os.path.dirname(os.path.abspath(__file__)), '..', 'cdna_kernels', NAME + '.s')
    open(out, 'w').write(txt)
    if a.prof: open(out + '.stamps', 'w').write(json.dumps(g.stamps))
    print('wrote', out, len(txt), 'bytes')
```

```python
from gen import *

def Sb(n): return 16 + 16 * (n & 1)
def Pb(n): return 48 + 8 * (n & 1)
def kvr(kt, pc): return ar(32 + 16 * (kt & 3) + 4 * pc)
def oacc(u): return ar(128 + 16 * u, 16) if u < 3 else vr(64, 16)
def qk(n, a):
    d = vr(Sb(n), 16)
    return f'{MF} {d}, {kvr(n >> 2, a)}, {ar(96 + 8 * (n & 3) + 4 * a)}, {d if a else 0}'
def pv(n, a):
    d = oacc(n & 3)
    return f'{MF} {d}, {kvr(n >> 2, 2 + a)}, {vr(Pb(n) + 4 * a)}, {0 if (n < 4 and a == 0) else d}'
def dn(k, t):
    d = ar(176 + 16 * t, 16)
    return f'{MF} {d}, {vr(208 + 16 * (k & 1) + 4 * t)}, {vr(80 + 4 * (k & 7))}, {d if k else 0}'
def dn_reads(k):
    L = []
    for t in range(4): L += tr_pair(208 + 16 * (k & 1) + 4 * t, 'v', GS * DS[k >> 2] + 896 * (k & 3) + 56 * t, ((0, 5),), 448)
    return L
def srcs(text):
    ops = [o.strip() for o in text.split(None, 1)[1].split(',')]
    return ops[1:3]

def phase2(s):
    P, S, o = s.P, s.S, s.opt
    D0 = o.get('d0', 13); NS = 64
    P.mark('p2head'); s.stamp('p2')
    S.force_key('kvl')
    P(qk(0, 0)); P(qk(0, 1))
    s.hmul(3, 0)
    S.force_key('gate', 'hmul')
    S.force(lambda a: a.cls == 'valu')
    T0 = S.now
    def at(step, g=0): return T0 + 8 * step + g - S.now
    S.push_wait('hst', delay=at(o.get('hflag', 4)), key='hf')
    S.push(f'buffer_store_dword v12, v11, {WS}, {sHfl} offen sc1', key='hf', prio=2)
    DL = list(range(3 + o.get('dearly', 0), 7)); npre = o.get('dpre', 2)
    for c in DL[:npre]: s.push_dma(d_dma(c), f'D{c}')
    S.push(f'buffer_load_dword v245, v9, {WS}, {sHpl} offen sc1', delay=at(o.get('hpoll', 6)), key='hp', prio=2)
    def hload(k):
        S.push(f'buffer_load_dwordx4 {vr(80 + 4 * (k & 7))}, v1, {WS}, {sHld} offen offset:{1024 * (k & 3)} sc1', key=f'h{k}', prio=2)
        if k & 3 == 3: S.push(f's_add_u32 {sHld}, {sHld}, 4096', key=f'h{k}', prio=2)
    plan = []
    for n in range(NS):
        k = n - D0
        q = [qk(n + 1, a) if n + 1 < NS else None for a in range(2)]
        p = [pv(n - 1, a) if n else None for a in range(2)]
        if 0 <= k < 28: plan.append([dn(k, 0), q[0], q[1], p[0], dn(k, 1), p[1], dn(k, 2), dn(k, 3)])
        else: plan.append([None, q[0], None, q[1], None, p[0], None, p[1]])
    flat = [(n, g) for n in range(NS) for g in range(8) if plan[n][g]]
    nxt = {flat[j]: plan[flat[j + 1][0]][flat[j + 1][1]] for j in range(len(flat) - 1)}
    for n in range(NS):
        kt, u, k = n >> 2, n & 3, n - D0
        if n in (D0, D0 + 28, 0): P.mark(f'step{n}'); s.stamp(f's{n}')
        if kt + 3 < 16:
            S.push(f'buffer_load_dwordx4 {kvr(kt + 3, u)}, v1, {WS}, {sKVld} offen offset:{1024 * u} sc1', key=f'kv{kt + 3}', prio=3)
            if u == 3: S.push(f's_add_u32 {sKVld}, {sKVld}, 4096', key=f'kv{kt + 3}', prio=3)
        if 1 <= k <= 20: hload(k + 7)
        rd = dn_reads(k + 1) if -1 <= k < 27 else []
        if n == D0 + 28:
            for t in range(4):
                for q in range(4):
                    S.push(f'buffer_store_dwordx4 {ar(176 + 16 * t + 4 * q)}, v1, {WS}, {sPst} offen offset:{1024 * q} sc1', delay=2, tag='pst', key='pst', prio=2)
                if t < 3: S.push(f's_add_u32 {sPst}, {sPst}, 16384', key='pst', prio=2)
            for c in range(7):
                s.push_dma(plane(3584 * c, WO, sWoff) + ([f's_add_u32 {sWoff}, {sWoff}, 57344'] if c < 6 else []), 'wo')
                if c == o.get('pflagc', 3):
                    S.push_wait('pst', key='pf'); S.push(f'buffer_store_dword v12, v11, {WS}, {sPfl} offen sc1', key='pf', prio=2)
        if n == o.get('xres', 44):
            S.force_key('hst'); P('v_accvgpr_read_b32 v200, a254\nv_accvgpr_read_b32 v201, a255')
            for q in range(4): S.push(f'buffer_load_dwordx2 {vr(192 + 2 * q, 2)}, v200, {X}, 0 offen offset:{16 * q}', key='xres', prio=2)
        if n == o.get('ppoll', 60): S.push(f'buffer_load_dword v246, v9, {WS}, {sPpl} offen sc1', key='pp', prio=2)
        if n >= 62:
            for q in range(4):
                S.push(f'ds_write_b128 v{2 + n - 62}, {ar(128 + 16 * (n - 62) + 4 * q)} offset:{MRG + 4096 * (n - 62) + 1024 * q}', delay=1, key='mw', prio=2)
        nm = sum(1 for x in plan[n] if x)
        for g in range(8):
            m = plan[n][g]
            if m:
                S.force_for(m); P(m)
                if (n, g) in nxt:
                    S.force_for(nxt[n, g]); P.need(*srcs(nxt[n, g]))
                if n == o.get('hchk', 9) and g == 1:
                    S.force_key('hp'); P(s.check('H', 245, 9, sHpl))
                    for k2 in range(8): hload(k2)
                    for c in DL[npre:]: s.push_dma(d_dma(c), f'D{c}')
                if n == D0 - 1 and g == 1 and rd:
                    s.barrier(('D0', 'D1', 'D2'), ('D0', 'D1', 'D2'))
                if n == D0 + 11 and g == 0: s.barrier(('D3', 'D4', 'D5', 'D6'), ('D3', 'D4', 'D5', 'D6'))
                if n == D0 + 28 and g == 1: P('s_barrier')
                take = -(-len(rd) // nm) if rd else 0
                for l in rd[:take]: P(l)
                rd = rd[take:]; nm -= 1
                S.fill(o.get('xb', 12) if not (0 <= k < 28) else 4, ('vm', 'ds', 'salu', 'fence'), maxn=o.get('xn', 2))
            r = Sb(n) + 2 * g
            P(f'v_exp_f32 v{r}, v{r}\nv_exp_f32 v{r + 1}, v{r + 1}')
            if g: P(f'v_cvt_pk_bf16_f32 v{Pb(n) + g - 1}, v{r - 2}, v{r - 1}')
            elif n: P(f'v_cvt_pk_bf16_f32 v{Pb(n - 1) + 7}, v{Sb(n - 1) + 14}, v{Sb(n - 1) + 15}')
            S.now += 1
    P.mark('merge'); s.stamp('merge')
    S.flush()
    P(pv(63, 0))
    P(f'v_cvt_pk_bf16_f32 v{Pb(63) + 7}, v{Sb(63) + 14}, v{Sb(63) + 15}')
    P(f's_mov_b32 {sC0}, {fb(LN2 * LN2)}')
    P(pv(63, 1))
    for q in range(4): P(f'ds_write_b128 v4, {ar(160 + 4 * q)} offset:{MRG + 8192 + 1024 * q}')
    P.wait_tag('wo', lgkm0=True); P('s_barrier')
    order = [3, 0, 1, 2]
    for q in order:
        for u in range(3): P(f'ds_read_b128 {vr(80 + 16 * u + 4 * q)}, v10 offset:{MRG + 4096 * u + 1024 * q}')
    def madd(q):
        for u in range(3):
            for e in range(4): P(f'v_add_f32 v{64 + 4 * q + e}, v{64 + 4 * q + e}, v{80 + 16 * u + 4 * q + e}')
    madd(3)
    P('v_mov_b32 v16, v76\nv_mov_b32 v17, v76')
    madd(0)
    P('v_permlane32_swap_b32 v16, v17')
    madd(1)
    P(f's_mov_b32 {sC1}, 0x1e000000\nv_subrev_u32 v18, 0x30800000, v17')
    madd(2)
    P(f'v_cmp_lt_u32 vcc, {sC1}, v18\ns_cbranch_vccnz FB\nFB_RET:')
    P(f'v_rcp_f32 v17, v17\ns_nop 0\nv_mul_f32 v17, {sC0}, v17')
    for a in range(2):
        for r in range(4 * a, 4 * a + 4):
            P(f'v_mul_f32 v{64 + 2 * r}, v17, v{64 + 2 * r}\nv_mul_f32 v{65 + 2 * r}, v17, v{65 + 2 * r}\nv_cvt_pk_bf16_f32 v{48 + r}, v{64 + 2 * r}, v{65 + 2 * r}')
        if a: P(f'v_cndmask_b32 v54, v54, 0, {HIM}\nv_cndmask_b32 v55, v55, 0, {HIM}')
        P(f'buffer_store_dwordx4 {vr(48 + 4 * a)}, v1, {WS}, {sOst} offen offset:{1024 * a} sc1', tag='ost')
    s.tail.append(fallback())
    phase3(s)

def fallback():
    L = [f'v_accvgpr_read_b32 v{16 + r}, a{120 + r}' for r in range(8)]
    L += [f'''v_cndmask_b32 v22, v22, 0, {HIM}
        s_lshl_b32 {sT0}, {sH}, 18
        s_add_u32 {sT0}, {sT0}, {KV}
        s_mov_b32 {sT1}, {sT0}
        s_mov_b32 {sCNT}, 64
        v_mov_b32 v24, 0xff800000
        FB1:
        buffer_load_dwordx4 v[80:83], v1, {WS}, {sT1} offen sc1
        buffer_load_dwordx4 v[84:87], v1, {WS}, {sT1} offen offset:1024 sc1
        s_waitcnt vmcnt(0)
        {MF} v[32:47], v[80:83], v[16:19], 0
        {MF} v[32:47], v[84:87], v[20:23], v[32:47]''']
    L += [f'v_max3_f32 v24, v24, v{32 + 2 * r}, v{33 + 2 * r}' for r in range(8)]
    L += [f'''s_add_u32 {sT1}, {sT1}, 4096
        s_sub_u32 {sCNT}, {sCNT}, 1
        s_cmp_lg_u32 {sCNT}, 0
        s_cbranch_scc1 FB1
        v_mov_b32 v25, v24
        s_mov_b32 {sCNT}, 64
        v_permlane32_swap_b32 v24, v25
        v_max_f32 v24, v24, v25''']
    L += [f'v_mov_b32 v{64 + r}, 0' for r in range(16)]
    L += ['FB2:'] + [f'buffer_load_dwordx4 {vr(80 + 4 * p)}, v1, {WS}, {sT0} offen offset:{1024 * p} sc1' for p in range(4)]
    L += [f'''s_waitcnt vmcnt(0)
        {MF} v[32:47], v[80:83], v[16:19], 0
        {MF} v[32:47], v[84:87], v[20:23], v[32:47]''']
    L += [f'v_sub_f32 v{32 + r}, v{32 + r}, v24' for r in range(16)]
    L += [f'v_exp_f32 v{32 + r}, v{32 + r}' for r in range(16)]
    L += [f'v_cvt_pk_bf16_f32 v{48 + r}, v{32 + 2 * r}, v{33 + 2 * r}' for r in range(8)]
    L += [f'''{MF} v[64:79], v[88:91], v[48:51], v[64:79]
        {MF} v[64:79], v[92:95], v[52:55], v[64:79]
        s_add_u32 {sT0}, {sT0}, 4096
        s_sub_u32 {sCNT}, {sCNT}, 1
        s_cmp_lg_u32 {sCNT}, 0
        s_cbranch_scc1 FB2
        v_mov_b32 v16, v76
        v_mov_b32 v17, v76
        v_permlane32_swap_b32 v16, v17
        s_nop 1
        s_branch FB_RET''']
    return 'FB:\n' + '\n'.join(L)

def phase3(s):
    P, S, o = s.P, s.S, s.opt
    P.mark('p3'); s.stamp('ost')
    P(s.check('P', 246, 9, sPpl))
    for kq in range(4):
        for q in range(4): P(f'buffer_load_dwordx4 {vr(128 + 16 * kq + 4 * q)}, v1, {WS}, {sPld} offen offset:{1024 * q} sc1')
        if kq < 3: P(f's_add_u32 {sPld}, {sPld}, 4096')
    P(f's_mul_i32 {sT1}, {sW}, 56')
    for gg in range(4):
        P(f'''s_add_u32 {sT0}, {sW}, {gg}
            s_and_b32 {sT0}, {sT0}, 3
            s_mul_i32 {sT0}, {sT0}, 6272
            s_add_u32 {sT0}, {sT0}, {sT1}
            v_add_u32 v{20 + gg}, {sT0}, v5''')
    P(f'''s_or_b32 {sT0}, s2, {sW}
        s_cmp_eq_u32 {sT0}, 0
        s_cselect_b32 {sT0}, 0, 0x80000000
        v_or_b32 v206, {sT0}, v11''')
    P.wait_tag('ost'); P(f'buffer_store_dword v12, v11, {WS}, {sOfl} offen sc1')
    s.stamp('oflag')
    def wo_reads(gg):
        for hh in range(4):
            for a in range(2):
                d = 32 * gg + 8 * hh + 4 * a; imm = (7 * hh + 4 * a) * 224
                P(f'ds_read_b64_tr_b16 a[{d}:{d + 1}], v{20 + gg} offset:{imm}')
                P(f'ds_read_b64_tr_b16 a[{d + 2}:{d + 3}], v{20 + gg} offset:{imm + 448}')
    for gg in range(4): wo_reads(gg)
    P(f'buffer_load_dword v247, v9, {WS}, {sOpl} offen sc1')
    def silu(r0, r1):
        for r in range(r0, r1, 2):
            for kq in range(1, 4):
                P(f'v_add_f32 v{128 + r}, v{128 + r}, v{128 + 16 * kq + r}\nv_add_f32 v{129 + r}, v{129 + r}, v{129 + 16 * kq + r}')
            P(f'''v_exp_f32 v28, -v{128 + r}
                v_exp_f32 v29, -v{129 + r}
                v_add_f32 v28, 1.0, v28
                v_add_f32 v29, 1.0, v29
                v_rcp_f32 v28, v28
                v_rcp_f32 v29, v29
                v_mul_f32 v{128 + r}, v{128 + r}, v28
                v_mul_f32 v{129 + r}, v{129 + r}, v29''')
    sp = o.get('silusplit', 6)
    silu(0, sp)
    s.stamp('fchk')
    P(s.check('F', 247, 9, sOpl))
    s.stamp('fok')
    for j in range(8):
        P(f'buffer_load_dwordx4 {vr(208 + 4 * j)}, v1, {WS}, {sOld if j < 4 else sOld2} offen offset:{1024 * (j & 3)} sc1')
    silu(sp, 16)
    for r in range(8):
        P(f'v_lshlrev_b32 v{144 + 2 * r}, 16, v{192 + r}\nv_and_b32 v{145 + 2 * r}, 0xffff0000, v{192 + r}')
    P('s_waitcnt lgkmcnt(0)')
    for j in range(8): P(f'ds_write_b128 v10, {vr(208 + 4 * j)} offset:{MRG + 1024 * j}')
    s.stamp('oland')
    acc = vr(112, 16)
    P(f'{MF} {acc}, {ar(0)}, {vr(208)}, 0')
    P('s_waitcnt lgkmcnt(0)\ns_barrier')
    rds = [f'ds_read_b128 {vr(16 + 32 * (gg - 1) + 4 * j)}, v{1 + gg} offset:{MRG + 1024 * j}' for gg in range(1, 4) for j in range(8)]
    ms = [f'{MF} {acc}, {ar(4 * j)}, {vr(208 + 4 * j) if j < 8 else vr(16 + 4 * (j - 8))}, {acc}' for j in range(1, 32)]
    for j, m in enumerate(ms):
        for l in rds[:3]: P(l)
        rds = rds[3:]
        P(m)
        if j + 1 < len(ms): P.need(*srcs(ms[j + 1]))
        if j == 10: P(f'buffer_store_dword v12, v206, {WS}, 0 offen sc1')
    s.stamp('mm')
    for q in range(4):
        for e in range(4): P(f'v_fma_f32 v{144 + 4 * q + e}, v{112 + 4 * q + e}, v{128 + 4 * q + e}, v{144 + 4 * q + e}')
        P(f'v_cvt_pk_bf16_f32 v{192 + 2 * q}, v{144 + 4 * q}, v{145 + 4 * q}\nv_cvt_pk_bf16_f32 v{193 + 2 * q}, v{146 + 4 * q}, v{147 + 4 * q}')
        P(f'buffer_store_dwordx2 {vr(192 + 2 * q, 2)}, v{201 if q == 3 else 200}, {OUT}, 0 offen offset:{16 * q}')
```

```python
import sys, os, struct, math
sys.path.insert(0, os.path.dirname(os.path.abspath(__file__)))
from asmlib import Prog
from sched import Sched

NAME = 'recurrent_scan__mha_block__swiglu_ffn__prompt'
def fb(x): return '0x%08x' % struct.unpack('<I', struct.pack('<f', x))[0]
LOG2E = 1.4426950408889634; LN2 = 0.6931471805599453
KVF, HF, PF, FF = 0x1000, 0x2000, 0x3000, 0x4000
KV, HB, PART, OB, PROF, WS_SZ = 0x10000, 0x410000, 0xB10000, 0x1B10000, 0x1F00000, 0x2000000
R = 40896; ASL = 6784; GS = 3712; XB = 12224; MRG = 25600
X, QKV, WO, G, U, WD, OUT, WS, MS = [f's[{b}:{b+3}]' for b in (4, 8, 12, 16, 20, 24, 28, 32, 36)]
sW, sH, sI, sKQ, sNQ, sWB, sNON, sCNT = [f's{i}' for i in range(40, 48)]
T2688, T3584 = 48, 55
sF, sDo, sWoff = 's3', 's64', 's65'
(sKVst, sKVfl, sKVpl, sKVld, sHst, sHst2, sHfl, sHpl, sHld, sPst, sPfl, sPpl, sPld, sOst, sOfl, sOpl, sOld, sOld2,
 sR2) = [f's{i}' for i in range(66, 85)]
sT0, sT1, sT2, sT3 = 's85', 's86', 's87', 's88'
sR0, sC0, sC1, sR1 = 's89', 's90', 's91', 's92'
HIM, L28 = 's[94:95]', 's[96:97]'
SPIN_MAX = 200000
def vr(b, n=4): return f'v[{b}:{b+n-1}]'
def ar(b, n=4): return f'a[{b}:{b+n-1}]'
AQ, AK, AV, AU, AG = 128, 144, 160, 176, 128
MF = 'v_mfma_f32_32x32x16_bf16'
GJ = (7, 6, 13, 8)
AS = (0, 1, 2, 3, 4, 5, 0); US = (2, 3, 4, 5, 6, 7, 8); DS = (9, 10, 1, 2, 3, 4, 5)
GRES = [list(range(168, 176)) + list(range(136, 144)), list(range(160, 168)) + list(range(240, 248)),
        list(range(144, 160)), list(range(128, 136))]
def plane(base, srd, so):
    return [f's_add_u32 m0, {sWB}, {base}'] + [f'buffer_load_dwordx4 v{GJ[j]}, {srd}, {so} offen offset:{896 * j} lds' for j in range(4)]
def a_dma(c):
    b = ASL * AS[c]; so = f's{T2688 + c}'
    return [f's_add_u32 m0, {sWB}, {b}', f'buffer_load_dwordx4 v11, {QKV}, {so} offen lds',
            f'buffer_load_dwordx4 v12, {QKV}, {so} offen offset:1024 lds',
            f's_add_u32 m0, {sWB}, {b + 2048 - 896}', f'buffer_load_dwordx4 v11, {QKV}, {so} offen offset:896 lds'] + plane(b + 3072, G, f's{T3584 + c}')
def u_dma(c): return plane(GS * US[c], U, f's{T3584 + c}')
def d_dma(c): return plane(GS * DS[c], WD, sDo) + ([f's_add_u32 {sDo}, {sDo}, 57344'] if c < 6 else [])
def tr_pair(dst, kind, addr, bases, second):
    for b, reg in bases:
        if 0 <= addr - b and addr - b + second <= 65535:
            return [f'ds_read_b64_tr_b16 {kind}[{dst}:{dst+1}], v{reg} offset:{addr - b}',
                    f'ds_read_b64_tr_b16 {kind}[{dst+2}:{dst+3}], v{reg} offset:{addr - b + second}']
    raise ValueError(addr)
NAT = ((0, 2), (57344, 3), (114688, 4))

class Gen:
    def __init__(s, stop=None, prof=False, **opt):
        s.P = Prog(); s.S = Sched(s.P); s.stop = stop; s.prof = prof; s.tail = []; s.nst = 0; s.opt = opt
        s.stamps = []
    def stamp(s, name):
        cal = s.opt.get('cal')
        if cal and cal[1] == name: s.P('s_memrealtime s[100:101]\ns_waitcnt lgkmcnt(0)\ns_mov_b32 s93, s100')
        if not s.prof: return
        s.P(f's_memtime s[100:101]\ns_waitcnt lgkmcnt(0)\nv_writelane_b32 v0, s100, {s.nst}')
        s.stamps.append(name); s.nst += 1
    def check(s, name, vreg, voff, sbase):
        s.tail.append(f'''SPIN_{name}:
            s_mov_b32 {sCNT}, 0
            SPINL_{name}:
            buffer_load_dword v{vreg}, v{voff}, {WS}, {sbase} offen sc1
            s_waitcnt vmcnt(0)
            v_cmp_ne_u32 vcc, {sNON}, v{vreg}
            s_cbranch_vccz RET_{name}
            s_add_u32 {sCNT}, {sCNT}, 1
            s_cmp_lt_u32 {sCNT}, {SPIN_MAX}
            s_cbranch_scc1 SPINL_{name}
            s_branch RET_{name}''')
        return f'v_cmp_ne_u32 vcc, {sNON}, v{vreg}\ns_cbranch_vccnz SPIN_{name}\nRET_{name}:'
    def push_dma(s, lines, tag, delay=0, prio=2, pace=0):
        for l in lines:
            if pace:
                s.nxt = max(getattr(s, 'nxt', 0), s.S.now + delay)
                s.S.push(l, delay=s.nxt - s.S.now - (1 if l[0] == 's' else 0), tag=tag, key=tag, prio=prio)
                if l[0] == 'b': s.nxt += pace
            else: s.S.push(l, delay=delay, tag=tag, key=tag, prio=prio)

    def prologue(s):
        P = s.P
        P('s_cmp_ge_u32 s2, 0x100\ns_cbranch_scc1 END')
        if s.prof: P('s_memtime s[98:99]')
        if s.opt.get('cal'): P('s_memrealtime s[98:99]')
        for r, o in ((4, 0), (32, 72), (8, 8), (16, 32), (20, 40), (24, 48), (12, 16), (28, 56)):
            P(f's_load_dwordx2 s[{r}:{r+1}], s[0:1], {o}')
        P(f'''v_lshrrev_b32 v1, 6, v0
            v_and_b32 v0, 63, v0
            s_and_b32 {sKQ}, s2, 3
            v_readfirstlane_b32 {sW}, v1
            s_bfe_u32 {sNQ}, s2, 0x20003
            s_lshr_b32 {sI}, s2, 5
            s_lshl1_add_u32 {sT0}, {sNQ}, {sI}
            s_mul_i32 s{T3584}, {sT0}, {128 * s.opt.get('rot', 1)}
            s_sub_u32 {sT0}, s{T3584}, 896
            s_cselect_b32 s{T3584}, s{T3584}, {sT0}
            s_and_b32 {sT0}, s2, 4
            s_lshl1_add_u32 {sI}, {sT0}, {sI}
            s_lshl2_add_u32 {sT1}, {sI}, {sW}
            s_mul_i32 {sWB}, {sW}, {R}
            s_mul_i32 {sT2}, {sT1}, {32 * 896}
            v_lshrrev_b32 v128, 3, v0
            v_and_b32 v129, 7, v0
            v_lshrrev_b32 v130, 4, v0
            v_xor_b32 v129, v129, v130
            v_mul_u32_u24 v128, 896, v128
            v_lshl_add_u32 v128, v129, 4, v128
            v_add_u32 v248, {sT2}, v128
            v_xor_b32 v249, 64, v248
            v_add_u32 v249, 6144, v249
            v_add_u32 v246, 12288, v248
            v_add_u32 v247, 12288, v249
            s_mov_b32 s6, 1835008
            s_mov_b32 s7, 0x20000
            s_mov_b32 s34, {WS_SZ}
            s_mov_b32 s35, 0x20000''')
        sal = []
        for b, n in ((8, 1204224), (16, 1605632), (20, 1605632), (24, 401408), (12, 401408), (28, 1835008), (36, 1605632)):
            sal += [f's_mov_b32 s{b+2}, {n}', f's_mov_b32 s{b+3}, 0x20000']
        P('s_waitcnt lgkmcnt(0)')
        if s.prof: P('s_memtime s[90:91]\ns_memrealtime s[92:93]\ns_waitcnt lgkmcnt(0)\nv_mov_b32 v240, s90\nv_mov_b32 v241, s92')
        for c in range(7):
            n = T3584 + c + 1
            P(f's_add_u32 m0, {sWB}, {XB + 4096 * c}')
            P(f's_add_u32 s{n}, s{n-1}, 128\ns_cmp_eq_u32 s{n}, 896\ns_cselect_b32 s{n}, 0, s{n}' if c < 6 else sal.pop())
            for rg in range(4):
                P(f'buffer_load_dwordx4 v{(248, 249, 246, 247)[rg]}, {X}, s{T3584 + c} offen offset:{1024 * rg} lds', tag=f'x{c}')
        for l in sal: P(l)
        if s.prof: P('s_memtime s[90:91]\ns_waitcnt lgkmcnt(0)\nv_mov_b32 v242, s90')
        P('buffer_load_dword v131, off, %s, 0 sc1' % WS, tag='non')
        for c in range(7): P(f's_mul_i32 s{T2688 + c}, s{T3584 + c}, 1344\ns_mul_i32 s{T3584 + c}, s{T3584 + c}, 1792')
        P(f'''s_lshr_b32 {sT0}, {sNQ}, 1
            s_lshr_b32 {sT2}, {sKQ}, 1
            s_xor_b32 {sT2}, {sT2}, {sT0}
            s_xor_b32 {sT2}, {sT2}, {sNQ}
            s_and_b32 {sT2}, {sT2}, 1
            s_lshl1_add_u32 {sT2}, {sT0}, {sT2}
            s_lshl2_add_u32 {sH}, {sKQ}, {sT2}
            s_lshl2_add_u32 {sF}, {sKQ}, {sNQ}''')
        s.addr_a()
        for l in a_dma(0): P(l, tag='A0')
        P(f'''s_mul_i32 {sT0}, {sKQ}, 401408
            s_add_u32 s24, s24, {sT0}
            s_addc_u32 s25, s25, 0
            s_lshl_b32 {sT0}, {sH}, 6
            s_add_u32 {sT2}, {sT0}, {sT1}
            s_lshl_b32 {sKVst}, {sT2}, 12
            s_add_u32 {sKVst}, {sKVst}, {KV}
            s_lshl2_add_u32 {sKVfl}, {sT2}, {KVF}
            s_lshl4_add_u32 {sT2}, {sW}, {sT0}
            s_lshl2_add_u32 {sKVpl}, {sT2}, {KVF}
            s_lshl_b32 {sKVld}, {sT2}, 12
            s_add_u32 {sKVld}, {sKVld}, {KV}
            s_lshl4_add_u32 {sT2}, {sT1}, {sH}
            s_lshl2_add_u32 {sOfl}, {sT2}, {FF}
            s_lshl_b32 {sOst}, {sT2}, 11
            s_add_u32 {sOst}, {sOst}, {OB}
            s_lshl4_add_u32 {sT2}, {sT1}, {sF}
            s_mul_i32 {sHst}, {sT2}, 7168
            s_add_u32 {sHst}, {sHst}, {HB}
            s_add_u32 {sHst2}, {sHst}, 4096
            s_lshl2_add_u32 {sHfl}, {sT2}, {HF}
            s_sub_u32 {sT2}, {sT2}, {sNQ}
            s_lshl2_add_u32 {sHpl}, {sT2}, {HF}
            s_mul_i32 {sHld}, {sT2}, 7168
            s_add_u32 {sHld}, {sHld}, {HB}
            s_lshl2_add_u32 {sT2}, {sT1}, {sNQ}
            s_lshl2_add_u32 {sT3}, {sT2}, {sKQ}
            s_lshl2_add_u32 {sPfl}, {sT3}, {PF}
            s_lshl4_add_u32 {sT3}, {sT2}, {sKQ}
            s_lshl_b32 {sPst}, {sT3}, 12
            s_add_u32 {sPst}, {sPst}, {PART}
            s_lshl2_add_u32 {sT0}, {sI}, {sKQ}
            s_lshl2_add_u32 {sT2}, {sT0}, {sNQ}
            s_lshl4_add_u32 {sPpl}, {sT2}, {PF}
            s_lshl2_add_u32 {sT2}, {sT2}, {sW}
            s_lshl_b32 {sPld}, {sT2}, 14
            s_add_u32 {sPld}, {sPld}, {PART}
            s_lshl2_add_u32 {sT2}, {sT0}, {sW}
            s_lshl4_add_u32 {sOpl}, {sT2}, {FF}
            s_lshl_b32 {sOld}, {sT2}, 13
            s_add_u32 {sOld}, {sOld}, {OB}
            s_add_u32 {sOld2}, {sOld}, 4096
            s_add_u32 {sR0}, {sW}, 1
            s_and_b32 {sR0}, {sR0}, 3
            s_mul_i32 {sR0}, {sR0}, {R}
            s_xor_b32 {sR1}, {sW}, 2
            s_mul_i32 {sR1}, {sR1}, {R}
            s_add_u32 {sR2}, {sW}, 3
            s_and_b32 {sR2}, {sR2}, 3
            s_mul_i32 {sR2}, {sR2}, {R}
            s_mov_b32 {sDo}, 0
            s_mov_b32 {sWoff}, 0
            s_mov_b32 s94, 0
            s_mov_b32 s95, -1
            s_mov_b32 s96, 0x10000000
            s_mov_b32 s97, 0x10000000''')
        P(f'''v_lshrrev_b32 v128, 5, v0
            v_and_b32 v134, 31, v0
            v_lshrrev_b32 v135, 3, v134
            v_lshlrev_b32 v135, 10, v135
            v_and_b32 v136, 7, v0
            v_lshl_add_u32 v135, v136, 7, v135
            v_bfe_u32 v136, v0, 1, 3
            v_xor_b32 v136, v136, v128
            s_add_u32 {sT2}, {sWB}, {XB}
            s_movk_i32 {sT3}, 0x60
            v_lshl_add_u32 v135, v136, 4, v135
            v_add_u32 v250, {sT2}, v135
            v_xad_u32 v251, v135, 32, {sT2}
            v_xad_u32 v252, v135, 64, {sT2}
            v_xor_b32 v253, {sT3}, v135
            v_add_u32 v253, {sT2}, v253
            v_bfe_u32 v129, v0, 2, 2
            v_mul_u32_u24 v5, {R}, v129
            v_lshl_add_u32 v129, v128, 3, v129
            v_bfe_u32 v130, v0, 4, 1
            v_lshlrev_b32 v133, 3, v132
            v_lshl_add_u32 v133, v130, 5, v133
            v_lshl_add_u32 v2, v129, 6, v133
            v_add_u32 v3, 57344, v2
            v_add_u32 v4, 114688, v2
            v_add_u32 v5, v5, v133
            v_mul_u32_u24 v129, 224, v128
            v_add_u32 v5, v5, v129
            v_accvgpr_write_b32 a253, v5
            v_add_u32 v5, v5, v129
            s_mul_i32 {sT2}, {sW}, 896
            s_mul_i32 {sT3}, {sNQ}, 224
            s_add_u32 {sT2}, {sT2}, {sT3}
            v_mul_u32_u24 v137, 3360, v137
            v_add3_u32 v137, v137, v1, {sT2}
            v_accvgpr_write_b32 a252, v137
            s_lshl2_add_u32 {sT2}, {sI}, {sKQ}
            s_mul_i32 {sT2}, {sT2}, {32 * 896}
            s_add_u32 {sT2}, {sT2}, {sT3}
            s_mul_i32 {sT3}, {sW}, 56
            s_add_u32 {sT2}, {sT2}, {sT3}
            v_mul_u32_u24 v134, 896, v134
            v_lshlrev_b32 v135, 3, v128
            v_add3_u32 v134, v134, v135, {sT2}
            v_lshl_or_b32 v135, v128, 31, v134
            v_accvgpr_write_b32 a254, v134
            v_accvgpr_write_b32 a255, v135
            v_and_b32 v14, 15, v0
            v_lshlrev_b32 v14, 2, v14
            v_mov_b32 v15, 0x3f803f80
            v_mov_b32 v254, 0
            v_mov_b32 v255, 0
            s_mov_b32 {sC0}, {fb(LN2 / math.sqrt(28.0))}
            s_mov_b32 {sC1}, {fb(LOG2E)}''')
        if s.opt.get('tg', 1):
            P(f'''s_lshr_b32 {sT2}, s2, 3
            s_lshl2_add_u32 s63, {sT2}, {sW}
            s_mul_i32 s63, s63, {25 * 128}
            s_lshr_b32 {sT3}, {sW}, 1
            s_lshl1_add_u32 {sT2}, {sT2}, {sT3}
            s_mul_i32 {sT3}, {sT2}, {7 * 3584}
            s_mul_i32 s62, {sKQ}, 896
            s_add_u32 {sT3}, {sT3}, s62
            s_mul_i32 {sT2}, {sT2}, {49 * 128}
            s_bitcmp1_b32 {sW}, 0
            s_cselect_b32 s36, s20, s24
            s_cselect_b32 s37, s21, s25
            s_cselect_b32 s38, s22, s26
            s_cselect_b32 {sT2}, {sT3}, {sT2}
            s_cselect_b32 {sT3}, {3584 - 896}, 0
            v_mul_u32_u24 v134, 37, v0
            v_lshrrev_b32 v134, 8, v134
            v_mul_u32_u24 v134, {sT3}, v134
            v_lshl_add_u32 v134, v0, 7, v134
            v_cmp_gt_u32 vcc, 49, v0
            v_add_u32 v134, {sT2}, v134
            v_bfrev_b32 v136, 1
            v_cndmask_b32 v232, v136, v134, vcc
            v_cmp_gt_u32 vcc, 25, v0
            v_lshl_add_u32 v134, v0, 7, s63
            s_nop 0
            v_cndmask_b32 v233, v136, v134, vcc''')
        if s.prof:
            P('v_mov_b32 v0, 0\nv_writelane_b32 v0, s98, 0\nv_readfirstlane_b32 s98, v240\nv_readfirstlane_b32 s99, v241\nv_readfirstlane_b32 s100, v242')
            P('v_writelane_b32 v0, s98, 1\nv_writelane_b32 v0, s99, 63\nv_writelane_b32 v0, s100, 2')
            s.stamps += ['t0', 'karg', 'xdma']; s.nst = 3
        s.stamp('xissued')

    def addr_a(s):
        s.P(f'''v_lshlrev_b32 v1, 4, v0
            v_and_b32 v132, 3, v0
            v_lshrrev_b32 v134, 2, v0
            s_mul_i32 {sT2}, {sW}, {16 * 2688}
            s_mul_i32 {sT3}, {sH}, 56
            s_add_u32 {sT2}, {sT2}, {sT3}
            v_lshlrev_b32 v135, 4, v132
            v_mul_u32_u24 v11, 2688, v134
            v_add3_u32 v11, v11, v135, {sT2}
            v_add_u32 v12, 768, v11
            s_mul_i32 {sT2}, {sW}, 3584
            s_mul_i32 {sT3}, {sF}, 224
            s_add_u32 {sT2}, {sT2}, {sT3}
            v_mul_u32_u24 v137, 37, v0
            v_lshrrev_b32 v137, 9, v137
            v_mul_u32_u24 v7, 14112, v137
            v_add3_u32 v7, v7, v1, {sT2}
            v_add_u32 v6, 56448, v7
            v_add_u32 v13, {2 * 56448}, v7
            v_add_u32 v8, {3 * 56448}, v7''')
    def spare(s, j): return AU + j
    def xphase(s):
        P = s.P; tg = s.opt.get('tg', 1)
        def valu(c):
            for r in range(16):
                x = 16 + 16 * c + r; j = 16 * c + r
                P(f'v_dot2c_f32_bf16 v254, v{x}, v15')
                if j < 56: P(f'v_lshlrev_b32 v{s.spare(j)}, 16, v{x}')
                P(f'v_dot2c_f32_bf16 v255, v{x}, v{x}')
                if j < 56: P(f'v_and_b32 v{x}, 0xffff0000, v{x}')
        for c in range(7):
            P.wait_tag(f'x{c}')
            if s.opt.get('xst'): s.stamp(f'x{c}')
            for q in range(4): P(f'ds_read_b128 {vr(16 + 16 * c + 4 * q)}, v{250 + q} offset:{4096 * c}')
            if c: valu(c - 1)
            for k, cc in enumerate(s.opt.get('xa', [6]), 1):
                if cc != c: continue
                assert c >= (0, 0, 1, 3, 5, 6)[k]
                P.need(vr(16 + 16 * c, 16))
                for l in a_dma(k): P(l, tag=f'A{k}')
        s.stamp('xlanded')
        valu(6)
        P(f'''v_readfirstlane_b32 {sNON}, v131
            v_permlane32_swap_b32 v254, v255
            s_mul_i32 {sNON}, {sNON}, 0x9e3779b1
            s_add_u32 {sNON}, {sNON}, 0x7f4a7c15''')
        P.wait_tag('A0')
        if s.opt.get('xst'): s.stamp('w1')
        P('s_barrier')

    def reads1(s, n):
        m = s.ml[n]; rg = 4 * (n % 6); t = m['t']
        if t is None: return []
        c, ks = m['s'] >> 2, m['s'] & 3
        if t in 'QKV': return tr_pair(rg, 'a', R * ks + ASL * AS[c] + 1024 * 'QVK'.index(t), NAT, 256)
        base = ASL * AS[c] + 3072 if t[0] == 'G' else GS * US[c]
        return tr_pair(rg, 'a', base + 896 * ks + 64 * int(t[1]), ((0, 5),), 224)
    def mtext(s, n):
        m = s.ml[n]
        if m['t'] is None: return m['text']
        acc = m['acc']; w = ar(4 * (n % 6)); x = vr(16 + 4 * m['s'])
        a, b = (x, w) if m['t'] == 'V' else (w, x)
        return f'{MF} {acc}, {a}, {b}, {0 if m["s"] == 0 else acc}'
    def norm(s, ks):
        S = s.S
        for r in range(4):
            j = 4 * ks + r; x = 16 + j
            if j < 56:
                sp = s.spare(j)
                S.push(f'v_fma_f32 v{sp}, v{sp}, v9, v10\nv_fma_f32 v{x}, v{x}, v9, v10\nv_cvt_pk_bf16_f32 v{x}, v{sp}, v{x}', key='norm')
            else:
                t = 248 + 2 * (j & 1)
                S.push(f'''v_lshlrev_b32 v{t}, 16, v{x}
                    v_and_b32 v{t+1}, 0xffff0000, v{x}
                    v_fma_f32 v{t}, v{t}, v9, v10
                    v_fma_f32 v{t+1}, v{t+1}, v9, v10
                    v_cvt_pk_bf16_f32 v{x}, v{t}, v{t+1}''', key='norm')
    def gate(s, tl, delay):
        res = GRES[tl]
        for r in range(0, len(res), 2):
            t = 248 + (r & 2); g, g1 = res[r], res[r + 1]; a = AG + 16 * tl + r
            s.S.push(f'''v_accvgpr_read_b32 v{g}, a{a}
                v_accvgpr_read_b32 v{g1}, a{a+1}
                v_exp_f32 v{t}, -v{g}
                v_exp_f32 v{t+1}, -v{g1}
                v_fma_f32 v{t}, v{t}, {sC1}, {sC1}
                v_fma_f32 v{t+1}, v{t+1}, {sC1}, {sC1}
                v_rcp_f32 v{t}, v{t}
                v_rcp_f32 v{t+1}, v{t+1}
                v_mul_f32 v{g}, v{g}, v{t}
                v_mul_f32 v{g1}, v{g1}, v{t+1}''', delay=delay, key='gate')
    def hmul(s, tl, delay):
        S = s.S; res = GRES[tl]; u = AU + 16 * tl
        for r in range(0, len(res), 2):
            S.push(f'''v_mul_f32 v{u+r}, v{res[r]}, v{u+r}
                v_mul_f32 v{u+r+1}, v{res[r+1]}, v{u+r+1}
                v_cvt_pk_bf16_f32 v{u + r // 2}, v{u+r}, v{u+r+1}''', delay=delay, key='hmul', prio=1)
            if r % 8 == 6:
                k = 2 * tl + r // 8
                S.push(f'buffer_store_dwordx4 {vr(u + 4 * (r // 8))}, v1, {WS}, {sHst if k < 4 else sHst2} offen offset:{1024 * (k & 3)} sc1',
                       delay=delay, tag='hst', key='hst', prio=2)
    def barrier(s, keys, tags, lgkm0=False):
        s.S.force_key(*keys); s.P.wait_tag(*tags, lgkm0=lgkm0); s.P('s_barrier')

    def phase1(s):
        P, S, o = s.P, s.S, s.opt
        ml = s.ml = []
        acc = dict(Q=vr(AQ, 16), K=vr(AK, 16), V=vr(AV, 16))
        for t in range(4): acc[f'G{t}'] = ar(AG + 16 * t, 16); acc[f'U{t}'] = vr(AU + 16 * t, 16)
        def add(t, ks): ml.append(dict(t=t, s=ks, acc=acc[t]))
        first = {}
        for nm, tiles, last in (('A', ['Q', 'K', 'V', 'G0', 'G1', 'G2', 'G3'], ['K', 'V', 'Q', 'G0', 'G1', 'G2', 'G3']),
                                ('U', ['U0', 'U1', 'U2', 'U3'], ['U0', 'U1', 'U2', 'U3'])):
            for c in range(7):
                first[nm, c] = len(ml)
                if c < 6:
                    for ks in range(4 * c, 4 * c + 4):
                        for t in tiles: add(t, ks)
                        if nm == 'U' and ks == o.get('sown', 0):
                            ml.append(dict(t=None, text=f'{MF} v[144:159], v[240:243], v[128:131], 0'))
                            ml.append(dict(t=None, text=f'{MF} v[144:159], v[244:247], v[132:135], v[144:159]', sown=1))
                else:
                    for t in last:
                        for ks in range(24, 28): add(t, ks)
        ix = {(m['t'], m['s']): n for n, m in enumerate(ml) if m['t']}
        N = len(ml)
        P.mark('stats')
        for n in range(4):
            for l in s.reads1(n): P(l)
        P(f'''v_add_f32 v254, v254, v255
            v_mov_b32 v255, v254
            s_mov_b32 {sT2}, {fb(1 / 448)}
            s_mov_b32 {sT3}, {fb(1e-5)}
            v_permlane32_swap_b32 v254, v255
            v_mul_f32 v254, {sT2}, v254
            v_mul_f32 v255, {sT2}, v255
            v_fma_f32 v255, -v254, v254, v255
            v_max_f32 v255, 0, v255
            v_add_f32 v255, {sT3}, v255
            v_rsq_f32 v255, v255
            s_nop 0
            v_mul_f32 v9, {fb(LOG2E)}, v255
            v_mul_f32 v10, v9, v254
            v_sub_f32 v10, 0, v10''')
        for ks in range(28): s.norm(ks)
        S.force_for(s.mtext(0))
        s.stamp('p1start')
        P.mark('pass1')
        pre = {}
        post = {}
        def at(d, n, f): d.setdefault(n, []).append(f)
        pace = o.get('pace', 3); bars = o.get('bars', [1, 2, 3, 4, 5, 6]); tg = o.get('tg', 1)
        def touches(k):
            if tg and k == o.get('t1', 6): s.push_dma([f'buffer_load_dword a240, v232, {MS}, 0 offen'], 'tch', pace=pace)
            if tg and k == o.get('t2', 6): s.push_dma([f'buffer_load_dword a242, v233, {WO}, 0 offen'], 'tch', pace=pace)
        for k in range(1 + len(o.get('xa', [6])), 6):
            s.push_dma(a_dma(k), f'A{k}', pace=pace); touches(k)
        def bar(c):
            nx = min([b for b in bars if b > c] + [7]); tg_ = [f'A{k}' for k in range(c, nx)]
            s.barrier(tg_, tg_, c in (1, 3))
            if c == min(bars):
                s.push_dma(a_dma(6), 'A6', pace=pace); touches(6)
                S.push(f'v_min_u32 v11, 1, v1\nv_lshlrev_b32 v11, 31, v11\nv_mov_b32 v12, {sNON}', key='misc', prio=-1)
            if c == min(b for b in bars if b >= 3):
                for u in range(3): s.push_dma(u_dma(u), f'U{u}', pace=pace)
        assert bars[0] == 1
        for c in bars: at(pre, first['A', c] - 4, lambda c=c: bar(c))
        def epi_k():
            for r in range(8): S.push(f'v_cvt_pk_bf16_f32 v{240+r}, v{AK+2*r}, v{AK+2*r+1}', key='k', delay=2, prio=1)
            S.push(f'v_cndmask_b32 v246, v246, v15, {HIM}\nv_cndmask_b32 v247, v247, 0, {HIM}', key='k', delay=2, prio=1)
            for a in range(2):
                S.push(f'buffer_store_dwordx4 {vr(240+4*a)}, v1, {WS}, {sKVst} offen offset:{1024*a} sc1', tag='kv', key='kv', prio=2)
        at(post, ix['K', 27], epi_k)
        def epi_v():
            for r in range(8):
                S.push(f'v_cvt_pk_bf16_f32 v{AV+r}, v{AV+2*r}, v{AV+2*r+1}\nv_cndmask_b32 v{AV+r}, v{AV+r}, v15, {L28}', key='v', delay=2, prio=1)
            for a in range(2):
                S.push(f'buffer_store_dwordx4 {vr(AV+4*a)}, v1, {WS}, {sKVst} offen offset:{2048+1024*a} sc1', tag='kv', key='kv', prio=2)
            for c in range(3, 7):
                s.push_dma(u_dma(c), f'U{c}')
            S.push('v_accvgpr_read_b32 v7, a252\nv_add_u32 v6, 13440, v7\nv_add_u32 v13, 26880, v7\nv_add_u32 v8, 40320, v7', key='dadr', prio=1)
        at(post, ix['V', 27], epi_v)
        def epi_q():
            for r in range(8):
                S.push(f'''v_mul_f32 v{AQ+2*r}, {sC0}, v{AQ+2*r}
                    v_mul_f32 v{AQ+2*r+1}, {sC0}, v{AQ+2*r+1}
                    v_cvt_pk_bf16_f32 v{AQ+r}, v{AQ+2*r}, v{AQ+2*r+1}''', key='q', delay=2, prio=1)
            S.push(f'v_cndmask_b32 v134, v134, 0, {HIM}\nv_cndmask_b32 v135, v135, 0, {HIM}', key='q', delay=2, prio=1)
            S.push(f'''v_add_u32 v10, {sWB}, v1
                v_add_u32 v2, {sR0}, v1
                v_add_u32 v3, {sR1}, v1
                v_add_u32 v4, {sR2}, v1
                v_and_b32 v9, 12, v14''', key='misc', prio=0)
        at(post, ix['Q', 27], epi_q)
        for t in range(2): at(post, ix[f'G{t}', 27], lambda t=t: s.gate(t, 2) if t == 0 else None)
        def b5():
            s.barrier(('U0', 'U1', 'U2'), ('U0', 'U1', 'U2'), True)
            for c in range(3): s.push_dma(d_dma(c), f'D{c}')
        at(pre, first['U', 0] - 4, b5)
        def sown():
            S.push('''v_max3_f32 v144, v144, v145, v146
                v_max3_f32 v147, v147, v148, v149
                v_max3_f32 v150, v150, v151, v152
                v_max3_f32 v153, v153, v154, v155
                v_max3_f32 v156, v156, v157, v158
                v_max3_f32 v144, v144, v147, v150
                v_max3_f32 v153, v153, v156, v159
                v_max_f32 v144, v144, v153
                v_mov_b32 v145, v144''', delay=2, key='qw', prio=1)
            S.push('v_permlane32_swap_b32 v144, v145', delay=5, key='qw', prio=1)
            S.push(f'''v_max_f32 v144, v144, v145
                v_cvt_pk_bf16_f32 v144, -v144, 0
                v_cndmask_b32 v134, v134, v144, {HIM}''', delay=5, key='qw', prio=1)
            S.push('ds_write_b128 v10, v[128:131]\nds_write_b128 v10, v[132:135] offset:1024', tag='qw', key='qw', prio=2)
            for t in range(1, 4): s.gate(t, 0)
        at(post, [n for n, m in enumerate(ml) if m.get('sown')][0], sown)
        def kvflag():
            S.force_key('kv', 'misc'); P.wait_tag('kv'); P(f'buffer_store_dword v12, v11, {WS}, {sKVfl} offen sc1')
        at(pre, first['U', 0] + o.get('kvflag', 24), kvflag)
        def b6():
            s.barrier(('U3', 'U4', 'qw'), ('U3', 'U4', 'qw'))
            for u in range(4):
                S.push(f'ds_read_b128 {ar(96 + 8 * u)}, v{(2, 3, 4, 10)[u]}\nds_read_b128 {ar(100 + 8 * u)}, v{(2, 3, 4, 10)[u]} offset:1024', key='qr', prio=2)
        at(pre, first['U', 3] - 4, b6)
        at(post, first['U', 3] + o.get('kvpoll', 8), lambda: S.push(f'buffer_load_dword v252, v14, {WS}, {sKVpl} offen sc1', key='kvp', prio=2))
        def b7():
            S.force_key('kvp'); P(s.check('KV', 252, 14, sKVpl))
            s.barrier(('U5', 'U6'), ('U5', 'U6'))
            for kt in range(3):
                for pc in range(4):
                    S.push(f'buffer_load_dwordx4 {ar(32 + 16 * kt + 4 * pc)}, v1, {WS}, {sKVld} offen offset:{1024 * pc} sc1', key='kvl', prio=2)
                S.push(f's_add_u32 {sKVld}, {sKVld}, 4096', key='kvl', prio=2)
            for c in range(3, 3 + o.get('dearly', 0)): s.push_dma(d_dma(c), f'D{c}')
        at(pre, first['U', 5] - 4, b7)
        for t in range(3): at(post, ix[f'U{t}', 27], lambda t=t: s.hmul(t, 2))
        S.vD = ix['U3', 27] - 4
        marks = {first['A', 1]: 'A1', first['A', 3]: 'A3', first['A', 5]: 'A5', first['A', 6]: 'A6', first['U', 0]: 'U0', first['U', 3]: 'U3', first['U', 5]: 'U5'}
        for n in range(N):
            if n in marks: P.mark(marks[n]); s.stamp(marks[n])
            S.force_for(s.mtext(n))
            P(s.mtext(n))
            if n + 1 < N and ml[n + 1]['t']: P.need(ar(4 * ((n + 1) % 6)))
            for f in pre.get(n, []): f()
            if n + 4 < N:
                for l in s.reads1(n + 4): P(l)
            if n + 5 == N: S.push('v_accvgpr_read_b32 v5, a253', key='misc', prio=1)
            for f in post.get(n, []): f()
            bud = o.get('bud', 16) + (8 if (n + 4 >= N or ml[n + 4]['t'] is None) else 0)
            used = S.fill(bud, ('vm', 'ds', 'fence'), maxn=o.get('maxmem', 1))
            if n + 2 < N: used += S.force_for(s.mtext(n + 2))
            used += S.fill(bud - used, ('valu', 'salu'))
            S.now += 1

    def finish(s):
        P = s.P
        s.S.flush()
        if s.prof:
            s.stamp('end')
            P('s_memrealtime s[100:101]\ns_waitcnt lgkmcnt(0)\nv_writelane_b32 v0, s100, 62')
            P(f'''s_lshl2_add_u32 {sT0}, s2, {sW}
                s_lshl_b32 {sT0}, {sT0}, 8
                s_add_u32 {sT0}, {sT0}, {PROF}
                v_lshrrev_b32 v1, 2, v1
                buffer_store_dword v0, v1, {WS}, {sT0} offen''')
        cal = s.opt.get('cal')
        if cal:
            P('s_waitcnt vmcnt(0)')
            if cal[1]: P(f's_sub_u32 s93, s93, s98\ns_mul_i32 s93, s93, {cal[2]}\ns_add_u32 s93, s93, {cal[0]}')
            else: P(f's_mov_b32 s93, {cal[0]}')
            P('CALL:\ns_memrealtime s[100:101]\ns_waitcnt lgkmcnt(0)\ns_sub_u32 s100, s100, s98\ns_cmp_lt_u32 s100, s93\ns_cbranch_scc1 CALL')
        P('s_waitcnt vmcnt(0)\nEND:\ns_endpgm')
        for t in s.tail:
            P.reset(); P(t)

    def build(s, verbose=0):
        s.prologue(); s.P.mark('xphase'); s.xphase(); s.phase1()
        if s.stop == 'p1':
            s.hmul(3, 0)
        else:
            import gen2
            gen2.phase2(s)
        s.finish()
        s.P.pass_waits(); s.P.pass_nops(verbose)
        if verbose: s.P.estimate()
        return s.P.text()

def wrap(body, name=NAME + '_kernel'):
    ref = open(os.path.join(os.path.dirname(os.path.abspath(__file__)), '..', 'cdna_kernels', NAME + '.s.ref')).read()
    head = ref[:ref.index('; @launch')]
    return (head + '; @launch grid=(256,1,1) block=(256,1,1) lds=163840\n.amdgcn_target "amdgcn-amd-amdhsa--gfx950"\n.text\n'
            f'.globl {name}\n.p2align 8\n.type {name},@function\n{name}:\n' + body +
            f'''.section .rodata,"a"
.p2align 6
.amdhsa_kernel {name}
  .amdhsa_next_free_vgpr 512
  .amdhsa_next_free_sgpr 102
  .amdhsa_accum_offset 256
  .amdhsa_group_segment_fixed_size 0
  .amdhsa_kernarg_size 80
  .amdhsa_user_sgpr_count 2
  .amdhsa_user_sgpr_kernarg_segment_ptr 1
  .amdhsa_system_sgpr_workgroup_id_x 1
.end_amdhsa_kernel
''')

if __name__ == '__main__':
    import argparse, json
    ap = argparse.ArgumentParser()
    ap.add_argument('-o', default=None); ap.add_argument('--stop', default=None); ap.add_argument('--prof', action='store_true')
    ap.add_argument('--opt', default='{}'); ap.add_argument('-v', type=int, default=3)
    a = ap.parse_args()
    g = Gen(stop=a.stop, prof=a.prof, **json.loads(a.opt))
    txt = wrap(g.build(a.v))
    out = a.o or os.path.join(os.path.dirname(os.path.abspath(__file__)), '..', 'cdna_kernels', NAME + '.s')
    open(out, 'w').write(txt)
    if a.prof: open(out + '.stamps', 'w').write(json.dumps(g.stamps))
    print('wrote', out, len(txt), 'bytes')
```

```python
from gen import *

def Sb(n): return 16 + 16 * (n & 1)
def Pb(n): return 48 + 8 * (n & 1)
def oacc(u): return ar(128 + 16 * u, 16) if u < 3 else vr(64, 16)
def qk(n, a):
    d = vr(Sb(n), 16)
    return f'{MF} {d}, {kvr(n >> 2, a)}, {ar(96 + 8 * (n & 3) + 4 * a)}, {d if a else 0}'
def pv(n, a):
    d = oacc(n & 3)
    return f'{MF} {d}, {kvr(n >> 2, 2 + a)}, {vr(Pb(n) + 4 * a)}, {0 if (n < 4 and a == 0) else d}'
HR = 12
def dn(k, t):
    d = vr(128 + 16 * t, 16)
    return f'{MF} {d}, {vr(208 + 16 * (k & 1) + 4 * t)}, {vr(80 + 4 * (k % HR))}, {d if k else 0}'
def dn_reads(k):
    L = []
    for t in range(4): L += tr_pair(208 + 16 * (k & 1) + 4 * t, 'v', GS * DS[k >> 2] + 896 * (k & 3) + 56 * t, ((0, 5),), 448)
    return L
def srcs(text):
    ops = [o.strip() for o in text.split(None, 1)[1].split(',')]
    return ops[1:3]
def part_loads(push):
    for kq in range(4):
        for a in range(2): push(f'buffer_load_dwordx4 {vr(160 + 8 * kq + 4 * a)}, v1, {WS}, {sPld} offen offset:{1024 * a} sc1')
        if kq < 3: push(f's_add_u32 {sPld}, {sPld}, 4096')

def phase2(s):
    P, S, o = s.P, s.S, s.opt
    D0 = o.get('d0', 26); NS = 64
    kr = o.get('kr', [2] * 14); assert sum(kr) == 28
    E = D0 + len(kr)
    P.mark('p2head'); s.stamp('p2')
    S.force_key('kv0')
    P(qk(0, 0)); P(qk(0, 1))
    S.force_key('kvl')
    s.hmul(3, 0)
    S.force_key('gate', 'hmul')
    S.force(lambda a: a.cls == 'valu')
    ev = {}
    def on(step, f): ev.setdefault(step, []).append(f)
    def hflag():
        S.push_wait('hst', key='hf'); S.push(f'buffer_store_dword v12, v11, {WS}, {sHfl} offen sc1', key='hf', prio=2)
    on(o.get('hflag', 12), hflag)
    on(o.get('hpoll', 19), lambda: S.push(f'buffer_load_dword v245, v9, {WS}, {sHpl} offen sc1', key='hp', prio=3))
    kvend = o.get('kvend', E - 1); nk = 4 * (16 - NKV0); kv1 = o.get('kv1', 24)
    for j in range(nk):
        t, pc = NKV0 + (j >> 2), j & 3
        st = j if j < kv1 else kv1 + (j - kv1) * (kvend - kv1) // (nk - 1 - kv1)
        if t >= 7: st = max(st, 4 * (t - 7) + (4 if pc < 2 else 5))
        assert st <= 4 * t - 4
        def f(t=t, pc=pc):
            S.push(f'buffer_load_dwordx4 {kvr(t, pc)}, v1, {WS}, {sKVld} offen offset:{1024 * pc} sc1', key=f'kv{t}', prio=3)
            if pc == 3 and t < 15: S.push(f's_add_u32 {sKVld}, {sKVld}, 4096', key=f'kv{t}', prio=3)
        on(st, f)
    def spread(lines, tag, steps):
        grp = []
        for l in lines:
            if l[0] == 'b' and grp and any(x[0] == 'b' for x in grp[-1]): grp.append([])
            elif l.startswith('s_add_u32 m0') or not grp: grp.append([])
            grp[-1].append(l)
        assert len(grp) == len(steps), (len(grp), len(steps))
        for gl, st in zip(grp, steps): on(st, lambda gl=gl: s.push_dma(gl, tag, delay=3))
    dst = o.get('dst', [-1, -1, 0, 4, 8, 12, 16])
    for c in range(7):
        if dst[c] >= 0: spread(d_dma(c), f'D{c}', [dst[c] + (j * o.get('dlen', 4)) // 4 for j in range(4)])
    def hload(k):
        S.push(f'buffer_load_dwordx4 {vr(80 + 4 * (k % HR))}, v1, {WS}, {sHld} offen offset:{1024 * (k & 3)} sc1', key=f'h{k}', prio=2)
        if k & 3 == 3: S.push(f's_add_u32 {sHld}, {sHld}, 4096', key=f'h{k}', prio=2)
    def pstore(t):
        for a in range(2):
            S.push(f'buffer_store_dwordx4 {vr(80 + 8 * t + 4 * a)}, v1, {WS}, {sPst} offen offset:{1024 * a} sc1', tag='pst', key='pst', prio=3)
        if t < 3: S.push(f's_add_u32 {sPst}, {sPst}, 16384', key='pst', prio=3)
    w0, w1 = E + o.get('w0', 2), o.get('w1', 57)
    for c in range(7):
        spread(plane(3584 * c, WO, sWoff) + ([f's_add_u32 {sWoff}, {sWoff}, 57344'] if c < 6 else []), 'wo',
               [w0 + (4 * c + j) * (w1 - w0) // 27 for j in range(4)])
    def pflag():
        S.push_wait('pst', key='pf'); S.push(f'buffer_store_dword v12, v11, {WS}, {sPfl} offen sc1', key='pf', prio=2)
    on(o.get('pflag', 55), pflag)
    def xres():
        S.force_key('hst'); P('v_accvgpr_read_b32 v200, a254\nv_accvgpr_read_b32 v201, a255')
        for q in range(4): S.push(f'buffer_load_dwordx2 {vr(192 + 2 * q, 2)}, v200, {X}, 0 offen offset:{16 * q}', key='xres', prio=2)
    on(o.get('xres', 58), xres)
    on(o.get('ppoll', 60), lambda: S.push(f'buffer_load_dword v246, v9, {WS}, {sPpl} offen sc1', key='pp', prio=3))
    for n in (62, 63):
        def f(n=n):
            for q in range(4):
                S.push(f'ds_write_b128 v{2 + n - 62}, {ar(128 + 16 * (n - 62) + 4 * q)} offset:{MRG + 4096 * (n - 62) + 1024 * q}', delay=1, key='mw', prio=2)
        on(n, f)
    plan = []; k = 0
    for n in range(NS):
        q = [(qk(n + 1, a), None) if n + 1 < NS else None for a in range(2)]
        p = [(pv(n - 1, a), None) if n else None for a in range(2)]
        kc = kr[n - D0] if D0 <= n < E else 0
        d = [(dn(k + j, t), (k + j, t)) for j in range(kc) for t in range(4)]; k += kc
        if kc == 0: G = [[], [q[0]], [], [q[1]], [], [p[0]], [], [p[1]]]
        elif kc == 1: G = [[d[0]], [q[0]], [q[1]], [p[0]], [d[1]], [p[1]], [d[2]], [d[3]]]
        else: G = [[d[0]], [q[0], d[1]], [q[1]], [d[2], d[3]], [d[4]], [p[0], d[5]], [p[1]], [d[6], d[7]]]
        plan.append([[m for m in g if m] for g in G])
    flat = [(n, g, m) for n in range(NS) for g in range(8) for m in plan[n][g]]
    pos = {m[1][0]: j for j, (n, g, m) in enumerate(flat) if m[1] and m[1][1] == 0}
    pos[-1] = min(j for j, (n, g, m) in enumerate(flat) if n == D0 - 1)
    dbars = o.get('dbars', [[0, 1, 2], [3, 4, 5, 6]])
    rd = []; j = 0; cv = []
    for n in range(NS):
        if n in (D0, E, 0): P.mark(f'step{n}'); s.stamp({0: 's0', D0: 'sD', E: 'sE'}[n])
        for f in ev.get(n, []): f()
        if n == E: cv = [(t, r) for t in range(4) for r in range(8)]
        for g in range(8):
            for m, kt in plan[n][g]:
                S.force_for(m); P(m)
                if j + 1 < len(flat):
                    nx = flat[j + 1][2][0]; S.force_for(nx); P.need(*srcs(nx))
                if n == o.get('hchk', 22) and g == 1:
                    S.force_key('hp'); P(s.check('H', 245, 9, sHpl))
                    for k2 in range(HR): hload(k2)
                if n == o.get('pchk', 64) and g == 1:
                    S.force_key('pp'); P(s.check('P', 246, 9, sPpl))
                    part_loads(lambda l: S.push(l, key='pl', prio=2))
                for k in range(-1, 27):
                    if pos[k] == j:
                        assert not rd
                        rd = dn_reads(k + 1); left = pos[k + 1] - j - 1
                        if k < 0: S.force_key('hst')
                        for b in dbars:
                            if 4 * b[0] == k + 1: s.barrier([f'D{c}' for c in b], [f'D{c}' for c in b])
                        if k >= 1 and k + HR - 1 < 28: hload(k + HR - 1)
                if n == E and g == 1: P('s_barrier')
                if rd:
                    take = -(-len(rd) // left); left -= 1
                    for l in rd[:take]: P(l)
                    rd = rd[take:]
                S.fill(o.get('xb', 12) if not (D0 <= n < E) else o.get('xd', 8), ('vm', 'ds', 'salu', 'fence'), maxn=o.get('xn', 2))
                j += 1
            r = Sb(n) + 2 * g
            P(f'v_exp_f32 v{r}, v{r}\nv_exp_f32 v{r + 1}, v{r + 1}')
            if g: P(f'v_cvt_pk_bf16_f32 v{Pb(n) + g - 1}, v{r - 2}, v{r - 1}')
            elif n: P(f'v_cvt_pk_bf16_f32 v{Pb(n - 1) + 7}, v{Sb(n - 1) + 14}, v{Sb(n - 1) + 15}')
            if cv and (n > E or g >= 2):
                for t, r in cv[:o.get('cvn', 2)]:
                    P(f'v_cvt_pk_bf16_f32 v{80 + 8 * t + r}, v{128 + 16 * t + 2 * r}, v{129 + 16 * t + 2 * r}')
                    if r == 7: pstore(t)
                cv = cv[o.get('cvn', 2):]
            S.now += 1
    P.mark('merge'); s.stamp('merge')
    S.flush()
    P(pv(63, 0))
    P(f'v_cvt_pk_bf16_f32 v{Pb(63) + 7}, v{Sb(63) + 14}, v{Sb(63) + 15}')
    P(f's_mov_b32 {sC0}, {fb(LN2 * LN2)}')
    P(pv(63, 1))
    for q in range(4): P(f'ds_write_b128 v4, {ar(160 + 4 * q)} offset:{MRG + 8192 + 1024 * q}')
    P.wait_tag('wo', lgkm0=True); P('s_barrier')
    order = [3, 0, 1, 2]
    for q in order:
        for u in range(3): P(f'ds_read_b128 {vr(80 + 16 * u + 4 * q)}, v10 offset:{MRG + 4096 * u + 1024 * q}')
    def madd(q):
        for u in range(3):
            for e in range(4): P(f'v_add_f32 v{64 + 4 * q + e}, v{64 + 4 * q + e}, v{80 + 16 * u + 4 * q + e}')
    madd(3)
    P('v_mov_b32 v16, v76\nv_mov_b32 v17, v76')
    madd(0)
    P('v_permlane32_swap_b32 v16, v17')
    madd(1)
    P(f's_mov_b32 {sC1}, 0x1e000000\nv_subrev_u32 v18, 0x30800000, v17')
    madd(2)
    P(f'v_cmp_lt_u32 vcc, {sC1}, v18\ns_cbranch_vccnz FB\nFB_RET:')
    P(f'v_rcp_f32 v17, v17\ns_nop 0\nv_mul_f32 v17, {sC0}, v17')
    for a in range(2):
        for r in range(4 * a, 4 * a + 4):
            P(f'v_mul_f32 v{64 + 2 * r}, v17, v{64 + 2 * r}\nv_mul_f32 v{65 + 2 * r}, v17, v{65 + 2 * r}\nv_cvt_pk_bf16_f32 v{48 + r}, v{64 + 2 * r}, v{65 + 2 * r}')
        if a: P(f'v_cndmask_b32 v54, v54, 0, {HIM}\nv_cndmask_b32 v55, v55, 0, {HIM}')
        P(f'buffer_store_dwordx4 {vr(48 + 4 * a)}, v1, {WS}, {sOst} offen offset:{1024 * a} sc1', tag='ost')
    s.tail.append(fallback())
    phase3(s)

def fallback():
    L = [f'v_accvgpr_read_b32 v{16 + r}, a{120 + r}' for r in range(8)]
    L += [f'''v_cndmask_b32 v22, v22, 0, {HIM}
        s_lshl_b32 {sT0}, {sH}, 18
        s_add_u32 {sT0}, {sT0}, {KV}
        s_mov_b32 {sT1}, {sT0}
        s_mov_b32 {sCNT}, 64
        v_mov_b32 v24, 0xff800000
        FB1:
        buffer_load_dwordx4 v[80:83], v1, {WS}, {sT1} offen sc1
        buffer_load_dwordx4 v[84:87], v1, {WS}, {sT1} offen offset:1024 sc1
        s_waitcnt vmcnt(0)
        {MF} v[32:47], v[80:83], v[16:19], 0
        {MF} v[32:47], v[84:87], v[20:23], v[32:47]''']
    L += [f'v_max3_f32 v24, v24, v{32 + 2 * r}, v{33 + 2 * r}' for r in range(8)]
    L += [f'''s_add_u32 {sT1}, {sT1}, 4096
        s_sub_u32 {sCNT}, {sCNT}, 1
        s_cmp_lg_u32 {sCNT}, 0
        s_cbranch_scc1 FB1
        v_mov_b32 v25, v24
        s_mov_b32 {sCNT}, 64
        v_permlane32_swap_b32 v24, v25
        v_max_f32 v24, v24, v25''']
    L += [f'v_mov_b32 v{64 + r}, 0' for r in range(16)]
    L += ['FB2:'] + [f'buffer_load_dwordx4 {vr(80 + 4 * p)}, v1, {WS}, {sT0} offen offset:{1024 * p} sc1' for p in range(4)]
    L += [f'''s_waitcnt vmcnt(0)
        {MF} v[32:47], v[80:83], v[16:19], 0
        {MF} v[32:47], v[84:87], v[20:23], v[32:47]''']
    L += [f'v_sub_f32 v{32 + r}, v{32 + r}, v24' for r in range(16)]
    L += [f'v_exp_f32 v{32 + r}, v{32 + r}' for r in range(16)]
    L += [f'v_cvt_pk_bf16_f32 v{48 + r}, v{32 + 2 * r}, v{33 + 2 * r}' for r in range(8)]
    L += [f'''{MF} v[64:79], v[88:91], v[48:51], v[64:79]
        {MF} v[64:79], v[92:95], v[52:55], v[64:79]
        s_add_u32 {sT0}, {sT0}, 4096
        s_sub_u32 {sCNT}, {sCNT}, 1
        s_cmp_lg_u32 {sCNT}, 0
        s_cbranch_scc1 FB2
        v_mov_b32 v16, v76
        v_mov_b32 v17, v76
        v_permlane32_swap_b32 v16, v17
        s_nop 1
        s_branch FB_RET''']
    return 'FB:\n' + '\n'.join(L)

def phase3(s):
    P, S, o = s.P, s.S, s.opt
    P.mark('p3'); s.stamp('ost')
    if o.get('pchk', 64) >= 64:
        P(s.check('P', 246, 9, sPpl)); part_loads(P)
    s.stamp('pok')
    P(f's_mul_i32 {sT1}, {sW}, 56')
    for gg in range(4):
        P(f'''s_add_u32 {sT0}, {sW}, {gg}
            s_and_b32 {sT0}, {sT0}, 3
            s_mul_i32 {sT0}, {sT0}, 6272
            s_add_u32 {sT0}, {sT0}, {sT1}
            v_add_u32 v{20 + gg}, {sT0}, v5''')
    P(f'''s_or_b32 {sT0}, s2, {sW}
        s_cmp_eq_u32 {sT0}, 0
        s_cselect_b32 {sT0}, 0, 0x80000000
        v_or_b32 v206, {sT0}, v11
        v_lshlrev_b32 v207, 8, v9
        s_mov_b32 {sT2}, 0x3f80
        s_mov_b32 {sT3}, 0x3f800000''')
    def wo_reads(gg):
        for hh in range(4):
            for a in range(2):
                d = 32 * gg + 8 * hh + 4 * a; imm = (7 * hh + 4 * a) * 224
                P(f'ds_read_b64_tr_b16 a[{d}:{d + 1}], v{20 + gg} offset:{imm}')
                P(f'ds_read_b64_tr_b16 a[{d + 2}:{d + 3}], v{20 + gg} offset:{imm + 448}')
    for gg in range(4): wo_reads(gg)
    for r in range(8):
        P(f'v_lshlrev_b32 v{144 + 2 * r}, 16, v{192 + r}\nv_and_b32 v{145 + 2 * r}, 0xffff0000, v{192 + r}')
    def silu(r0, r1):
        L = []
        for r4 in range(r0, r1, 4):
            for kq in range(4):
                for r in (r4, r4 + 2):
                    src = 160 + 8 * kq + r // 2
                    L += [f'v_dot2_f32_bf16 v{128 + r}, v{src}, {sT2}, {f"v{128 + r}" if kq else 0}',
                          f'v_dot2_f32_bf16 v{129 + r}, v{src}, {sT3}, {f"v{129 + r}" if kq else 0}']
            L += [f'v_exp_f32 v{28 + e}, -v{128 + r4 + e}' for e in range(4)]
            L += [f'v_add_f32 v{28 + e}, 1.0, v{28 + e}' for e in range(4)]
            L += [f'v_rcp_f32 v{28 + e}, v{28 + e}' for e in range(4)]
            L += [f'v_mul_f32 v{128 + r4 + e}, v{128 + r4 + e}, v{28 + e}' for e in range(4)]
        return L
    sp = o.get('silusplit', 16)
    oloads = [f'buffer_load_dwordx4 {vr(208 + 4 * j)}, v1, {WS}, {sOld if j < 4 else sOld2} offen offset:{1024 * (j & 3)} sc1' for j in range(8)]
    omax = ['v_max3_u32 v24, v208, v209, v210', 'v_max3_u32 v25, v211, v212, v213']
    omax += [f'v_max3_u32 v{24 + (j & 1)}, v{24 + (j & 1)}, v{214 + 2 * j}, v{215 + 2 * j}' for j in range(13)]
    omax += ['v_max_u32 v24, v24, v25', 'v_cmp_eq_u32 vcc, -1, v24']
    for l in silu(0, sp): P(l)
    s.stamp('silu')
    if o.get('owait', 1): P.wait_tag('ost')
    s.stamp('owait')
    for l in oloads: P(l)
    for l in silu(sp, 16): P(l)
    for l in omax: P(l)
    P('s_cbranch_vccnz OSPIN\nORET:')
    s.tail.append(f'''OSPIN:
        s_mov_b32 {sCNT}, 0
        OSPINL:
        s_add_u32 {sCNT}, {sCNT}, 1
        s_cmp_ge_u32 {sCNT}, {SPIN_MAX}
        s_cbranch_scc1 ORET
        buffer_load_dword v24, v207, {WS}, {sOld} offen sc1
        buffer_load_dword v25, v207, {WS}, {sOld2} offen sc1
        s_waitcnt vmcnt(0)
        v_max_u32 v24, v24, v25
        v_cmp_eq_u32 vcc, -1, v24
        s_cbranch_vccnz OSPINL
        ''' + '\n'.join(oloads) + '\ns_waitcnt vmcnt(0)\n' + '\n'.join(omax) + '\ns_cbranch_vccnz OSPINL\ns_branch ORET')
    s.stamp('ook')
    P('s_waitcnt lgkmcnt(0)')
    for j in range(8): P(f'ds_write_b128 v10, {vr(208 + 4 * j)} offset:{MRG + 1024 * j}')
    s.stamp('oland')
    acc = vr(112, 16)
    P(f'{MF} {acc}, {ar(0)}, {vr(208)}, 0')
    P('s_waitcnt lgkmcnt(0)\ns_barrier')
    rds = [f'ds_read_b128 {vr(16 + 32 * (gg - 1) + 4 * j)}, v{1 + gg} offset:{MRG + 1024 * j}' for gg in range(1, 4) for j in range(8)]
    ms = [f'{MF} {acc}, {ar(4 * j)}, {vr(208 + 4 * j) if j < 8 else vr(16 + 4 * (j - 8))}, {acc}' for j in range(1, 32)]
    for j, m in enumerate(ms):
        for l in rds[:3]: P(l)
        rds = rds[3:]
        P(m)
        if j + 1 < len(ms): P.need(*srcs(ms[j + 1]))
        if j == 10: P(f'buffer_store_dword v12, v206, {WS}, 0 offen sc1')
    s.stamp('mm')
    for q in range(4):
        for e in range(4): P(f'v_fma_f32 v{144 + 4 * q + e}, v{112 + 4 * q + e}, v{128 + 4 * q + e}, v{144 + 4 * q + e}')
        P(f'v_cvt_pk_bf16_f32 v{192 + 2 * q}, v{144 + 4 * q}, v{145 + 4 * q}\nv_cvt_pk_bf16_f32 v{193 + 2 * q}, v{146 + 4 * q}, v{147 + 4 * q}')
        P(f'buffer_store_dwordx2 {vr(192 + 2 * q, 2)}, v{201 if q == 3 else 200}, {OUT}, 0 offen offset:{16 * q}')
```

```python
import sys, os, struct, math
sys.path.insert(0, os.path.dirname(os.path.abspath(__file__)))
from asmlib import Prog
from sched import Sched

NAME = 'recurrent_scan__mha_block__swiglu_ffn__prompt'
def fb(x): return '0x%08x' % struct.unpack('<I', struct.pack('<f', x))[0]
LOG2E = 1.4426950408889634; LN2 = 0.6931471805599453
KVF, HF, PF, FF = 0x1000, 0x2000, 0x3000, 0x4000
KV, HB, PART, OB, PROF, WS_SZ = 0x10000, 0x410000, 0xB10000, 0x1B10000, 0x1F00000, 0x2000000
R = 40896; ASL = 6784; GS = 3712; XB = 12224; MRG = 25600
X, QKV, WO, G, U, WD, OUT, WS, MS = [f's[{b}:{b+3}]' for b in (4, 8, 12, 16, 20, 24, 28, 32, 36)]
sW, sH, sI, sKQ, sNQ, sWB, sNON, sCNT = [f's{i}' for i in range(40, 48)]
T2688, T3584 = 48, 55
sF, sDo, sWoff = 's3', 's64', 's65'
(sKVst, sKVfl, sKVpl, sKVld, sHst, sHst2, sHfl, sHpl, sHld, sPst, sPfl, sPpl, sPld, sOst, sOfl, sOpl, sOld, sOld2,
 sR2) = [f's{i}' for i in range(66, 85)]
sT0, sT1, sT2, sT3 = 's85', 's86', 's87', 's88'
sR0, sC0, sC1, sR1 = 's89', 's90', 's91', 's92'
HIM, L28 = 's[94:95]', 's[96:97]'
SPIN_MAX = 200000
def vr(b, n=4): return f'v[{b}:{b+n-1}]'
def ar(b, n=4): return f'a[{b}:{b+n-1}]'
AQ, AK, AV, AU, AG = 128, 144, 160, 176, 128
MF = 'v_mfma_f32_32x32x16_bf16'
GJ = (7, 6, 13, 8)
AS = (0, 1, 2, 3, 4, 5, 0); US = (2, 3, 4, 5, 6, 7, 8); DS = (9, 10, 1, 2, 3, 4, 5)
GRES = [list(range(168, 176)) + list(range(136, 144)), list(range(160, 168)) + list(range(240, 248)),
        list(range(144, 160)), list(range(128, 136))]
NKV0 = 4
def kvr(kt, pc): return ar((32, 48, 64, 80, 192, 208, 224)[kt % 7] + 4 * pc)
def plane(base, srd, so):
    return [f's_add_u32 m0, {sWB}, {base}'] + [f'buffer_load_dwordx4 v{GJ[j]}, {srd}, {so} offen offset:{896 * j} lds' for j in range(4)]
def a_dma(c):
    b = ASL * AS[c]; so = f's{T2688 + c}'
    return [f's_add_u32 m0, {sWB}, {b}', f'buffer_load_dwordx4 v11, {QKV}, {so} offen lds',
            f'buffer_load_dwordx4 v12, {QKV}, {so} offen offset:1024 lds',
            f's_add_u32 m0, {sWB}, {b + 2048 - 896}', f'buffer_load_dwordx4 v11, {QKV}, {so} offen offset:896 lds'] + plane(b + 3072, G, f's{T3584 + c}')
def u_dma(c): return plane(GS * US[c], U, f's{T3584 + c}')
def d_dma(c): return plane(GS * DS[c], WD, sDo) + ([f's_add_u32 {sDo}, {sDo}, 57344'] if c < 6 else [])
def tr_pair(dst, kind, addr, bases, second):
    for b, reg in bases:
        if 0 <= addr - b and addr - b + second <= 65535:
            return [f'ds_read_b64_tr_b16 {kind}[{dst}:{dst+1}], v{reg} offset:{addr - b}',
                    f'ds_read_b64_tr_b16 {kind}[{dst+2}:{dst+3}], v{reg} offset:{addr - b + second}']
    raise ValueError(addr)
NAT = ((0, 2), (57344, 3), (114688, 4))

class Gen:
    def __init__(s, stop=None, prof=False, **opt):
        s.P = Prog(); s.S = Sched(s.P); s.stop = stop; s.prof = prof; s.tail = []; s.nst = 0; s.opt = opt
        s.stamps = []
    def stamp(s, name):
        cal = s.opt.get('cal')
        if cal and cal[1] == name: s.P('s_memrealtime s[100:101]\ns_waitcnt lgkmcnt(0)\ns_mov_b32 s93, s100')
        if not s.prof: return
        s.P(f's_memtime s[100:101]\ns_waitcnt lgkmcnt(0)\nv_writelane_b32 v0, s100, {s.nst}')
        s.stamps.append(name); s.nst += 1
    def check(s, name, vreg, voff, sbase):
        s.tail.append(f'''SPIN_{name}:
            s_mov_b32 {sCNT}, 0
            SPINL_{name}:
            buffer_load_dword v{vreg}, v{voff}, {WS}, {sbase} offen sc1
            s_waitcnt vmcnt(0)
            v_cmp_ne_u32 vcc, {sNON}, v{vreg}
            s_cbranch_vccz RET_{name}
            s_add_u32 {sCNT}, {sCNT}, 1
            s_cmp_lt_u32 {sCNT}, {SPIN_MAX}
            s_cbranch_scc1 SPINL_{name}
            s_branch RET_{name}''')
        return f'v_cmp_ne_u32 vcc, {sNON}, v{vreg}\ns_cbranch_vccnz SPIN_{name}\nRET_{name}:'
    def push_dma(s, lines, tag, delay=0, prio=2, pace=0):
        for l in lines:
            if pace:
                s.nxt = max(getattr(s, 'nxt', 0), s.S.now + delay)
                s.S.push(l, delay=s.nxt - s.S.now - (1 if l[0] == 's' else 0), tag=tag, key=tag, prio=prio)
                if l[0] == 'b': s.nxt += pace
            else: s.S.push(l, delay=delay, tag=tag, key=tag, prio=prio)

    def prologue(s):
        P = s.P
        P('s_cmp_ge_u32 s2, 0x100\ns_cbranch_scc1 END')
        if s.prof: P('s_memtime s[98:99]')
        if s.opt.get('cal'): P('s_memrealtime s[98:99]')
        for r, o in ((4, 0), (32, 72), (8, 8), (16, 32), (20, 40), (24, 48), (12, 16), (28, 56)):
            P(f's_load_dwordx2 s[{r}:{r+1}], s[0:1], {o}')
        P(f'''v_lshrrev_b32 v1, 6, v0
            v_and_b32 v0, 63, v0
            s_and_b32 {sKQ}, s2, 3
            v_readfirstlane_b32 {sW}, v1
            s_bfe_u32 {sNQ}, s2, 0x20003
            s_lshr_b32 {sI}, s2, 5
            s_lshl1_add_u32 {sT0}, {sNQ}, {sI}
            s_mul_i32 s{T3584}, {sT0}, {128 * s.opt.get('rot', 1)}
            s_sub_u32 {sT0}, s{T3584}, 896
            s_cselect_b32 s{T3584}, s{T3584}, {sT0}
            s_and_b32 {sT0}, s2, 4
            s_lshl1_add_u32 {sI}, {sT0}, {sI}
            s_lshl2_add_u32 {sT1}, {sI}, {sW}
            s_mul_i32 {sWB}, {sW}, {R}
            s_mul_i32 {sT2}, {sT1}, {32 * 896}
            v_lshrrev_b32 v128, 3, v0
            v_and_b32 v129, 7, v0
            v_lshrrev_b32 v130, 4, v0
            v_xor_b32 v129, v129, v130
            v_mul_u32_u24 v128, 896, v128
            v_lshl_add_u32 v128, v129, 4, v128
            v_add_u32 v248, {sT2}, v128
            v_xor_b32 v249, 64, v248
            v_add_u32 v249, 6144, v249
            v_add_u32 v246, 12288, v248
            v_add_u32 v247, 12288, v249
            s_mov_b32 s6, 1835008
            s_mov_b32 s7, 0x20000
            s_mov_b32 s34, {WS_SZ}
            s_mov_b32 s35, 0x20000''')
        sal = []
        for b, n in ((8, 1204224), (16, 1605632), (20, 1605632), (24, 401408), (12, 401408), (28, 1835008), (36, 1605632)):
            sal += [f's_mov_b32 s{b+2}, {n}', f's_mov_b32 s{b+3}, 0x20000']
        P('s_waitcnt lgkmcnt(0)')
        if s.prof: P('s_memtime s[90:91]\ns_memrealtime s[92:93]\ns_waitcnt lgkmcnt(0)\nv_mov_b32 v240, s90\nv_mov_b32 v241, s92')
        for c in range(7):
            n = T3584 + c + 1
            P(f's_add_u32 m0, {sWB}, {XB + 4096 * c}')
            P(f's_add_u32 s{n}, s{n-1}, 128\ns_cmp_eq_u32 s{n}, 896\ns_cselect_b32 s{n}, 0, s{n}' if c < 6 else sal.pop())
            for rg in range(4):
                P(f'buffer_load_dwordx4 v{(248, 249, 246, 247)[rg]}, {X}, s{T3584 + c} offen offset:{1024 * rg} lds', tag=f'x{c}')
        for l in sal: P(l)
        if s.prof: P('s_memtime s[90:91]\ns_waitcnt lgkmcnt(0)\nv_mov_b32 v242, s90')
        P('buffer_load_dword v131, off, %s, 0 sc1' % WS, tag='non')
        for c in range(7): P(f's_mul_i32 s{T2688 + c}, s{T3584 + c}, 1344\ns_mul_i32 s{T3584 + c}, s{T3584 + c}, 1792')
        P(f'''s_lshr_b32 {sT0}, {sNQ}, 1
            s_lshr_b32 {sT2}, {sKQ}, 1
            s_xor_b32 {sT2}, {sT2}, {sT0}
            s_xor_b32 {sT2}, {sT2}, {sNQ}
            s_and_b32 {sT2}, {sT2}, 1
            s_lshl1_add_u32 {sT2}, {sT0}, {sT2}
            s_lshl2_add_u32 {sH}, {sKQ}, {sT2}
            s_lshl2_add_u32 {sF}, {sKQ}, {sNQ}''')
        s.addr_a()
        for l in a_dma(0): P(l, tag='A0')
        P(f'''s_mul_i32 {sT0}, {sKQ}, 401408
            s_add_u32 s24, s24, {sT0}
            s_addc_u32 s25, s25, 0
            s_lshl_b32 {sT0}, {sH}, 6
            s_add_u32 {sT2}, {sT0}, {sT1}
            s_lshl_b32 {sKVst}, {sT2}, 12
            s_add_u32 {sKVst}, {sKVst}, {KV}
            s_lshl2_add_u32 {sKVfl}, {sT2}, {KVF}
            s_lshl4_add_u32 {sT2}, {sW}, {sT0}
            s_lshl2_add_u32 {sKVpl}, {sT2}, {KVF}
            s_lshl_b32 {sKVld}, {sT2}, 12
            s_add_u32 {sKVld}, {sKVld}, {KV}
            s_lshl4_add_u32 {sT2}, {sT1}, {sH}
            s_lshl2_add_u32 {sOfl}, {sT2}, {FF}
            s_lshl_b32 {sOst}, {sT2}, 11
            s_add_u32 {sOst}, {sOst}, {OB}
            s_lshl4_add_u32 {sT2}, {sT1}, {sF}
            s_mul_i32 {sHst}, {sT2}, 7168
            s_add_u32 {sHst}, {sHst}, {HB}
            s_add_u32 {sHst2}, {sHst}, 4096
            s_lshl2_add_u32 {sHfl}, {sT2}, {HF}
            s_sub_u32 {sT2}, {sT2}, {sNQ}
            s_lshl2_add_u32 {sHpl}, {sT2}, {HF}
            s_mul_i32 {sHld}, {sT2}, 7168
            s_add_u32 {sHld}, {sHld}, {HB}
            s_lshl2_add_u32 {sT2}, {sT1}, {sNQ}
            s_lshl2_add_u32 {sT3}, {sT2}, {sKQ}
            s_lshl2_add_u32 {sPfl}, {sT3}, {PF}
            s_lshl4_add_u32 {sT3}, {sT2}, {sKQ}
            s_lshl_b32 {sPst}, {sT3}, 12
            s_add_u32 {sPst}, {sPst}, {PART}
            s_lshl2_add_u32 {sT0}, {sI}, {sKQ}
            s_lshl2_add_u32 {sT2}, {sT0}, {sNQ}
            s_lshl4_add_u32 {sPpl}, {sT2}, {PF}
            s_lshl2_add_u32 {sT2}, {sT2}, {sW}
            s_lshl_b32 {sPld}, {sT2}, 14
            s_add_u32 {sPld}, {sPld}, {PART}
            s_lshl2_add_u32 {sT2}, {sT0}, {sW}
            s_lshl4_add_u32 {sOpl}, {sT2}, {FF}
            s_lshl_b32 {sOld}, {sT2}, 13
            s_add_u32 {sOld}, {sOld}, {OB}
            s_add_u32 {sOld2}, {sOld}, 4096
            s_add_u32 {sR0}, {sW}, 1
            s_and_b32 {sR0}, {sR0}, 3
            s_mul_i32 {sR0}, {sR0}, {R}
            s_xor_b32 {sR1}, {sW}, 2
            s_mul_i32 {sR1}, {sR1}, {R}
            s_add_u32 {sR2}, {sW}, 3
            s_and_b32 {sR2}, {sR2}, 3
            s_mul_i32 {sR2}, {sR2}, {R}
            s_mov_b32 {sDo}, 0
            s_mov_b32 {sWoff}, 0
            s_mov_b32 s94, 0
            s_mov_b32 s95, -1
            s_mov_b32 s96, 0x10000000
            s_mov_b32 s97, 0x10000000''')
        P(f'''v_lshrrev_b32 v128, 5, v0
            v_and_b32 v134, 31, v0
            v_lshrrev_b32 v135, 3, v134
            v_lshlrev_b32 v135, 10, v135
            v_and_b32 v136, 7, v0
            v_lshl_add_u32 v135, v136, 7, v135
            v_bfe_u32 v136, v0, 1, 3
            v_xor_b32 v136, v136, v128
            s_add_u32 {sT2}, {sWB}, {XB}
            s_movk_i32 {sT3}, 0x60
            v_lshl_add_u32 v135, v136, 4, v135
            v_add_u32 v250, {sT2}, v135
            v_xad_u32 v251, v135, 32, {sT2}
            v_xad_u32 v252, v135, 64, {sT2}
            v_xor_b32 v253, {sT3}, v135
            v_add_u32 v253, {sT2}, v253
            v_bfe_u32 v129, v0, 2, 2
            v_mul_u32_u24 v5, {R}, v129
            v_lshl_add_u32 v129, v128, 3, v129
            v_bfe_u32 v130, v0, 4, 1
            v_lshlrev_b32 v133, 3, v132
            v_lshl_add_u32 v133, v130, 5, v133
            v_lshl_add_u32 v2, v129, 6, v133
            v_add_u32 v3, 57344, v2
            v_add_u32 v4, 114688, v2
            v_add_u32 v5, v5, v133
            v_mul_u32_u24 v129, 224, v128
            v_add_u32 v5, v5, v129
            v_accvgpr_write_b32 a253, v5
            v_add_u32 v5, v5, v129
            s_mul_i32 {sT2}, {sW}, 896
            s_mul_i32 {sT3}, {sNQ}, 224
            s_add_u32 {sT2}, {sT2}, {sT3}
            v_mul_u32_u24 v137, 3360, v137
            v_add3_u32 v137, v137, v1, {sT2}
            v_accvgpr_write_b32 a252, v137
            s_lshl2_add_u32 {sT2}, {sI}, {sKQ}
            s_mul_i32 {sT2}, {sT2}, {32 * 896}
            s_add_u32 {sT2}, {sT2}, {sT3}
            s_mul_i32 {sT3}, {sW}, 56
            s_add_u32 {sT2}, {sT2}, {sT3}
            v_mul_u32_u24 v134, 896, v134
            v_lshlrev_b32 v135, 3, v128
            v_add3_u32 v134, v134, v135, {sT2}
            v_lshl_or_b32 v135, v128, 31, v134
            v_accvgpr_write_b32 a254, v134
            v_accvgpr_write_b32 a255, v135
            v_and_b32 v14, 15, v0
            v_lshlrev_b32 v14, 2, v14
            v_mov_b32 v15, 0x3f803f80
            v_mov_b32 v254, 0
            v_mov_b32 v255, 0
            s_mov_b32 {sC0}, {fb(LN2 / math.sqrt(28.0))}
            s_mov_b32 {sC1}, {fb(LOG2E)}''')
        if s.opt.get('tg', 1):
            P(f'''s_lshr_b32 {sT2}, s2, 3
            s_lshl2_add_u32 s63, {sT2}, {sW}
            s_mul_i32 s63, s63, {25 * 128}
            s_lshr_b32 {sT3}, {sW}, 1
            s_lshl1_add_u32 {sT2}, {sT2}, {sT3}
            s_mul_i32 {sT3}, {sT2}, {7 * 3584}
            s_mul_i32 s62, {sKQ}, 896
            s_add_u32 {sT3}, {sT3}, s62
            s_mul_i32 {sT2}, {sT2}, {49 * 128}
            s_bitcmp1_b32 {sW}, 0
            s_cselect_b32 s36, s20, s24
            s_cselect_b32 s37, s21, s25
            s_cselect_b32 s38, s22, s26
            s_cselect_b32 {sT2}, {sT3}, {sT2}
            s_cselect_b32 {sT3}, {3584 - 896}, 0
            v_mul_u32_u24 v134, 37, v0
            v_lshrrev_b32 v134, 8, v134
            v_mul_u32_u24 v134, {sT3}, v134
            v_lshl_add_u32 v134, v0, 7, v134
            v_cmp_gt_u32 vcc, 49, v0
            v_add_u32 v134, {sT2}, v134
            v_bfrev_b32 v136, 1
            v_cndmask_b32 v232, v136, v134, vcc
            v_cmp_gt_u32 vcc, 25, v0
            v_lshl_add_u32 v134, v0, 7, s63
            s_nop 0
            v_cndmask_b32 v233, v136, v134, vcc''')
        if s.prof:
            P('v_mov_b32 v0, 0\nv_writelane_b32 v0, s98, 0\nv_readfirstlane_b32 s98, v240\nv_readfirstlane_b32 s99, v241\nv_readfirstlane_b32 s100, v242')
            P('v_writelane_b32 v0, s98, 1\nv_writelane_b32 v0, s99, 63\nv_writelane_b32 v0, s100, 2')
            s.stamps += ['t0', 'karg', 'xdma']; s.nst = 3
        s.stamp('xissued')

    def addr_a(s):
        s.P(f'''v_lshlrev_b32 v1, 4, v0
            v_and_b32 v132, 3, v0
            v_lshrrev_b32 v134, 2, v0
            s_mul_i32 {sT2}, {sW}, {16 * 2688}
            s_mul_i32 {sT3}, {sH}, 56
            s_add_u32 {sT2}, {sT2}, {sT3}
            v_lshlrev_b32 v135, 4, v132
            v_mul_u32_u24 v11, 2688, v134
            v_add3_u32 v11, v11, v135, {sT2}
            v_add_u32 v12, 768, v11
            s_mul_i32 {sT2}, {sW}, 3584
            s_mul_i32 {sT3}, {sF}, 224
            s_add_u32 {sT2}, {sT2}, {sT3}
            v_mul_u32_u24 v137, 37, v0
            v_lshrrev_b32 v137, 9, v137
            v_mul_u32_u24 v7, 14112, v137
            v_add3_u32 v7, v7, v1, {sT2}
            v_add_u32 v6, 56448, v7
            v_add_u32 v13, {2 * 56448}, v7
            v_add_u32 v8, {3 * 56448}, v7''')
    def spare(s, j): return AU + j
    def xphase(s):
        P = s.P; tg = s.opt.get('tg', 1)
        def valu(c):
            for r in range(16):
                x = 16 + 16 * c + r; j = 16 * c + r
                P(f'v_dot2c_f32_bf16 v254, v{x}, v15')
                if j < 56: P(f'v_lshlrev_b32 v{s.spare(j)}, 16, v{x}')
                P(f'v_dot2c_f32_bf16 v255, v{x}, v{x}')
                if j < 56: P(f'v_and_b32 v{x}, 0xffff0000, v{x}')
        for c in range(7):
            P.wait_tag(f'x{c}')
            if s.opt.get('xst'): s.stamp(f'x{c}')
            for q in range(4): P(f'ds_read_b128 {vr(16 + 16 * c + 4 * q)}, v{250 + q} offset:{4096 * c}')
            if c: valu(c - 1)
            for k, cc in enumerate(s.opt.get('xa', [6]), 1):
                if cc != c: continue
                assert c >= (0, 0, 1, 3, 5, 6)[k]
                P.need(vr(16 + 16 * c, 16))
                for l in a_dma(k): P(l, tag=f'A{k}')
        s.stamp('xlanded')
        valu(6)
        P(f'''v_readfirstlane_b32 {sNON}, v131
            v_permlane32_swap_b32 v254, v255
            s_mul_i32 {sNON}, {sNON}, 0x9e3779b1
            s_add_u32 {sNON}, {sNON}, 0x7f4a7c15''')
        P.wait_tag('A0')
        if s.opt.get('xst'): s.stamp('w1')
        P('s_barrier')

    def reads1(s, n):
        m = s.ml[n]; rg = 4 * (n % 6); t = m['t']
        if t is None: return []
        c, ks = m['s'] >> 2, m['s'] & 3
        if t in 'QKV': return tr_pair(rg, 'a', R * ks + ASL * AS[c] + 1024 * 'QVK'.index(t), NAT, 256)
        base = ASL * AS[c] + 3072 if t[0] == 'G' else GS * US[c]
        return tr_pair(rg, 'a', base + 896 * ks + 64 * int(t[1]), ((0, 5),), 224)
    def mtext(s, n):
        m = s.ml[n]
        if m['t'] is None: return m['text']
        acc = m['acc']; w = ar(4 * (n % 6)); x = vr(16 + 4 * m['s'])
        a, b = (x, w) if m['t'] == 'V' else (w, x)
        return f'{MF} {acc}, {a}, {b}, {0 if m["s"] == 0 else acc}'
    def norm(s, ks):
        S = s.S
        for r in range(4):
            j = 4 * ks + r; x = 16 + j
            if j < 56:
                sp = s.spare(j)
                S.push(f'v_fma_f32 v{sp}, v{sp}, v9, v10\nv_fma_f32 v{x}, v{x}, v9, v10\nv_cvt_pk_bf16_f32 v{x}, v{sp}, v{x}', key='norm')
            else:
                t = 248 + 2 * (j & 1)
                S.push(f'''v_lshlrev_b32 v{t}, 16, v{x}
                    v_and_b32 v{t+1}, 0xffff0000, v{x}
                    v_fma_f32 v{t}, v{t}, v9, v10
                    v_fma_f32 v{t+1}, v{t+1}, v9, v10
                    v_cvt_pk_bf16_f32 v{x}, v{t}, v{t+1}''', key='norm')
    def gate(s, tl, delay):
        res = GRES[tl]
        for r in range(0, len(res), 2):
            t = 248 + (r & 2); g, g1 = res[r], res[r + 1]; a = AG + 16 * tl + r
            s.S.push(f'''v_accvgpr_read_b32 v{g}, a{a}
                v_accvgpr_read_b32 v{g1}, a{a+1}
                v_exp_f32 v{t}, -v{g}
                v_exp_f32 v{t+1}, -v{g1}
                v_fma_f32 v{t}, v{t}, {sC1}, {sC1}
                v_fma_f32 v{t+1}, v{t+1}, {sC1}, {sC1}
                v_rcp_f32 v{t}, v{t}
                v_rcp_f32 v{t+1}, v{t+1}
                v_mul_f32 v{g}, v{g}, v{t}
                v_mul_f32 v{g1}, v{g1}, v{t+1}''', delay=delay, key='gate')
    def hmul(s, tl, delay):
        S = s.S; res = GRES[tl]; u = AU + 16 * tl
        for r in range(0, len(res), 2):
            S.push(f'''v_mul_f32 v{u+r}, v{res[r]}, v{u+r}
                v_mul_f32 v{u+r+1}, v{res[r+1]}, v{u+r+1}
                v_cvt_pk_bf16_f32 v{u + r // 2}, v{u+r}, v{u+r+1}''', delay=delay, key='hmul', prio=1)
            if r % 8 == 6:
                k = 2 * tl + r // 8
                S.push(f'buffer_store_dwordx4 {vr(u + 4 * (r // 8))}, v1, {WS}, {sHst if k < 4 else sHst2} offen offset:{1024 * (k & 3)} sc1',
                       delay=delay, tag='hst', key='hst', prio=2)
    def barrier(s, keys, tags, lgkm0=False):
        s.S.force_key(*keys); s.P.wait_tag(*tags, lgkm0=lgkm0); s.P('s_barrier')

    def phase1(s):
        P, S, o = s.P, s.S, s.opt
        ml = s.ml = []
        acc = dict(Q=vr(AQ, 16), K=vr(AK, 16), V=vr(AV, 16))
        for t in range(4): acc[f'G{t}'] = ar(AG + 16 * t, 16); acc[f'U{t}'] = vr(AU + 16 * t, 16)
        def add(t, ks): ml.append(dict(t=t, s=ks, acc=acc[t]))
        first = {}
        for nm, tiles, last in (('A', ['Q', 'K', 'V', 'G0', 'G1', 'G2', 'G3'], ['K', 'V', 'Q', 'G0', 'G1', 'G2', 'G3']),
                                ('U', ['U0', 'U1', 'U2', 'U3'], ['U0', 'U1', 'U2', 'U3'])):
            for c in range(7):
                first[nm, c] = len(ml)
                if c < 6:
                    for ks in range(4 * c, 4 * c + 4):
                        for t in tiles: add(t, ks)
                        if nm == 'U' and ks == o.get('sown', 0):
                            ml.append(dict(t=None, text=f'{MF} v[144:159], v[240:243], v[128:131], 0'))
                            ml.append(dict(t=None, text=f'{MF} v[144:159], v[244:247], v[132:135], v[144:159]', sown=1))
                else:
                    for t in last:
                        for ks in range(24, 28): add(t, ks)
        ix = {(m['t'], m['s']): n for n, m in enumerate(ml) if m['t']}
        N = len(ml)
        P.mark('stats')
        for n in range(4):
            for l in s.reads1(n): P(l)
        P(f'''v_add_f32 v254, v254, v255
            v_mov_b32 v255, v254
            s_mov_b32 {sT2}, {fb(1 / 448)}
            s_mov_b32 {sT3}, {fb(1e-5)}
            v_permlane32_swap_b32 v254, v255
            v_mul_f32 v254, {sT2}, v254
            v_mul_f32 v255, {sT2}, v255
            v_fma_f32 v255, -v254, v254, v255
            v_max_f32 v255, 0, v255
            v_add_f32 v255, {sT3}, v255
            v_rsq_f32 v255, v255
            s_nop 0
            v_mul_f32 v9, {fb(LOG2E)}, v255
            v_mul_f32 v10, v9, v254
            v_sub_f32 v10, 0, v10''')
        for ks in range(28): s.norm(ks)
        S.force_for(s.mtext(0))
        s.stamp('p1start')
        P.mark('pass1')
        pre = {}
        post = {}
        def at(d, n, f): d.setdefault(n, []).append(f)
        pace = o.get('pace', 3); bars = o.get('bars', [1, 2, 3, 4, 5, 6]); tg = o.get('tg', 1)
        def touches(k):
            if tg and k == o.get('t1', 6): s.push_dma([f'buffer_load_dword a240, v232, {MS}, 0 offen'], 'tch', pace=pace)
            if tg and k == o.get('t2', 6): s.push_dma([f'buffer_load_dword a242, v233, {WO}, 0 offen'], 'tch', pace=pace)
        for k in range(1 + len(o.get('xa', [6])), 6):
            s.push_dma(a_dma(k), f'A{k}', pace=pace); touches(k)
        def bar(c):
            nx = min([b for b in bars if b > c] + [7]); tg_ = [f'A{k}' for k in range(c, nx)]
            s.barrier(tg_, tg_, c in (1, 3))
            if c == min(bars):
                s.push_dma(a_dma(6), 'A6', pace=pace); touches(6)
                S.push(f'v_min_u32 v11, 1, v1\nv_lshlrev_b32 v11, 31, v11\nv_mov_b32 v12, {sNON}', key='misc', prio=-1)
                S.push('\n'.join(f'v_accvgpr_write_b32 a{244 + r}, -1' for r in range(4)), key='misc', prio=-1)
            if c == min(b for b in bars if b >= 3):
                for u in range(3): s.push_dma(u_dma(u), f'U{u}', pace=pace)
        assert bars[0] == 1
        for c in bars: at(pre, first['A', c] - 4, lambda c=c: bar(c))
        def epi_k():
            for a in range(2): S.push(f'buffer_store_dwordx4 a[244:247], v1, {WS}, {sOst} offen offset:{1024 * a} sc1', key='kv', prio=2)
            for r in range(8): S.push(f'v_cvt_pk_bf16_f32 v{240+r}, v{AK+2*r}, v{AK+2*r+1}', key='k', delay=2, prio=1)
            S.push(f'v_cndmask_b32 v246, v246, v15, {HIM}\nv_cndmask_b32 v247, v247, 0, {HIM}', key='k', delay=2, prio=1)
            for a in range(2):
                S.push(f'buffer_store_dwordx4 {vr(240+4*a)}, v1, {WS}, {sKVst} offen offset:{1024*a} sc1', tag='kv', key='kv', prio=2)
        at(post, ix['K', 27], epi_k)
        def epi_v():
            for r in range(8):
                S.push(f'v_cvt_pk_bf16_f32 v{AV+r}, v{AV+2*r}, v{AV+2*r+1}\nv_cndmask_b32 v{AV+r}, v{AV+r}, v15, {L28}', key='v', delay=2, prio=1)
            for a in range(2):
                S.push(f'buffer_store_dwordx4 {vr(AV+4*a)}, v1, {WS}, {sKVst} offen offset:{2048+1024*a} sc1', tag='kv', key='kv', prio=2)
            for c in range(3, 7):
                s.push_dma(u_dma(c), f'U{c}')
            S.push('v_accvgpr_read_b32 v7, a252\nv_add_u32 v6, 13440, v7\nv_add_u32 v13, 26880, v7\nv_add_u32 v8, 40320, v7', key='dadr', prio=1)
        at(post, ix['V', 27], epi_v)
        def epi_q():
            for r in range(8):
                S.push(f'''v_mul_f32 v{AQ+2*r}, {sC0}, v{AQ+2*r}
                    v_mul_f32 v{AQ+2*r+1}, {sC0}, v{AQ+2*r+1}
                    v_cvt_pk_bf16_f32 v{AQ+r}, v{AQ+2*r}, v{AQ+2*r+1}''', key='q', delay=2, prio=1)
            S.push(f'v_cndmask_b32 v134, v134, 0, {HIM}\nv_cndmask_b32 v135, v135, 0, {HIM}', key='q', delay=2, prio=1)
            S.push(f'''v_add_u32 v10, {sWB}, v1
                v_add_u32 v2, {sR0}, v1
                v_add_u32 v3, {sR1}, v1
                v_add_u32 v4, {sR2}, v1
                v_and_b32 v9, 12, v14''', key='misc', prio=0)
        at(post, ix['Q', 27], epi_q)
        for t in range(2): at(post, ix[f'G{t}', 27], lambda t=t: s.gate(t, 2) if t == 0 else None)
        def b5():
            s.barrier(('U0', 'U1', 'U2'), ('U0', 'U1', 'U2'), True)
            for c in range(3):
                if o.get('dst', [-1, -1, 0])[c] < 0: s.push_dma(d_dma(c), f'D{c}', delay=o.get('ddel', 0), pace=o.get('dpace', 0))
        at(pre, first['U', 0] - 4, b5)
        def sown():
            S.push('''v_max3_f32 v144, v144, v145, v146
                v_max3_f32 v147, v147, v148, v149
                v_max3_f32 v150, v150, v151, v152
                v_max3_f32 v153, v153, v154, v155
                v_max3_f32 v156, v156, v157, v158
                v_max3_f32 v144, v144, v147, v150
                v_max3_f32 v153, v153, v156, v159
                v_max_f32 v144, v144, v153
                v_mov_b32 v145, v144''', delay=2, key='qw', prio=1)
            S.push('v_permlane32_swap_b32 v144, v145', delay=5, key='qw', prio=1)
            S.push(f'''v_max_f32 v144, v144, v145
                v_cvt_pk_bf16_f32 v144, -v144, 0
                v_cndmask_b32 v134, v134, v144, {HIM}''', delay=5, key='qw', prio=1)
            S.push('ds_write_b128 v10, v[128:131]\nds_write_b128 v10, v[132:135] offset:1024', tag='qw', key='qw', prio=2)
            for t in range(1, 4): s.gate(t, 0)
        at(post, [n for n, m in enumerate(ml) if m.get('sown')][0], sown)
        def kvflag():
            S.force_key('kv', 'misc'); P.wait_tag('kv'); P(f'buffer_store_dword v12, v11, {WS}, {sKVfl} offen sc1')
        at(pre, first['U', 0] + o.get('kvflag', 24), kvflag)
        def b6():
            s.barrier(('U3', 'U4', 'qw'), ('U3', 'U4', 'qw'))
            for u in range(4):
                S.push(f'ds_read_b128 {ar(96 + 8 * u)}, v{(2, 3, 4, 10)[u]}\nds_read_b128 {ar(100 + 8 * u)}, v{(2, 3, 4, 10)[u]} offset:1024', key='qr', prio=2)
        at(pre, first['U', 3] - 4, b6)
        at(post, first['U', 3] + o.get('kvpoll', 8), lambda: S.push(f'buffer_load_dword v252, v14, {WS}, {sKVpl} offen sc1', key='kvp', prio=2))
        def b7():
            S.force_key('kvp'); P(s.check('KV', 252, 14, sKVpl))
            s.barrier(('U5', 'U6'), ('U5', 'U6'))
            for kt in range(NKV0):
                for pc in range(4):
                    S.push(f'buffer_load_dwordx4 {kvr(kt, pc)}, v1, {WS}, {sKVld} offen offset:{1024 * pc} sc1', key='kvl', prio=2)
                S.push(f's_add_u32 {sKVld}, {sKVld}, 4096', key='kvl', prio=2)
        at(pre, first['U', 5] - 4, b7)
        for t in range(3): at(post, ix[f'U{t}', 27], lambda t=t: s.hmul(t, 2))
        S.vD = ix['U3', 27] - 4
        marks = {first['A', 1]: 'A1', first['A', 3]: 'A3', first['A', 5]: 'A5', first['A', 6]: 'A6', first['U', 0]: 'U0', first['U', 3]: 'U3', first['U', 5]: 'U5'}
        for n in range(N):
            if n in marks: P.mark(marks[n]); s.stamp(marks[n])
            S.force_for(s.mtext(n))
            P(s.mtext(n))
            if n + 1 < N and ml[n + 1]['t']: P.need(ar(4 * ((n + 1) % 6)))
            for f in pre.get(n, []): f()
            if n + 4 < N:
                for l in s.reads1(n + 4): P(l)
            if n + 5 == N: S.push('v_accvgpr_read_b32 v5, a253', key='misc', prio=1)
            for f in post.get(n, []): f()
            bud = o.get('bud', 16) + (8 if (n + 4 >= N or ml[n + 4]['t'] is None) else 0)
            used = S.fill(bud, ('vm', 'ds', 'fence'), maxn=o.get('maxmem', 1))
            if n + 2 < N: used += S.force_for(s.mtext(n + 2))
            used += S.fill(bud - used, ('valu', 'salu'))
            S.now += 1

    def finish(s):
        P = s.P
        s.S.flush()
        if s.prof:
            s.stamp('end')
            P('s_memrealtime s[100:101]\ns_waitcnt lgkmcnt(0)\nv_writelane_b32 v0, s100, 62')
            P(f'''s_lshl2_add_u32 {sT0}, s2, {sW}
                s_lshl_b32 {sT0}, {sT0}, 8
                s_add_u32 {sT0}, {sT0}, {PROF}
                v_lshrrev_b32 v1, 2, v1
                buffer_store_dword v0, v1, {WS}, {sT0} offen''')
        cal = s.opt.get('cal')
        if cal:
            P('s_waitcnt vmcnt(0)')
            if cal[1]: P(f's_sub_u32 s93, s93, s98\ns_mul_i32 s93, s93, {cal[2]}\ns_add_u32 s93, s93, {cal[0]}')
            else: P(f's_mov_b32 s93, {cal[0]}')
            P('CALL:\ns_memrealtime s[100:101]\ns_waitcnt lgkmcnt(0)\ns_sub_u32 s100, s100, s98\ns_cmp_lt_u32 s100, s93\ns_cbranch_scc1 CALL')
        P('s_waitcnt vmcnt(0)\nEND:\ns_endpgm')
        for t in s.tail:
            P.reset(); P(t)

    def build(s, verbose=0):
        s.prologue(); s.P.mark('xphase'); s.xphase(); s.phase1()
        if s.stop == 'p1':
            s.hmul(3, 0)
        else:
            import gen2
            gen2.phase2(s)
        s.finish()
        s.P.pass_waits(); s.P.pass_nops(verbose)
        if verbose: s.P.estimate()
        return s.P.text()

def wrap(body, name=NAME + '_kernel'):
    ref = open(os.path.join(os.path.dirname(os.path.abspath(__file__)), '..', 'cdna_kernels', NAME + '.s.ref')).read()
    head = ref[:ref.index('; @launch')]
    return (head + '; @launch grid=(256,1,1) block=(256,1,1) lds=163840\n.amdgcn_target "amdgcn-amd-amdhsa--gfx950"\n.text\n'
            f'.globl {name}\n.p2align 8\n.type {name},@function\n{name}:\n' + body +
            f'''.section .rodata,"a"
.p2align 6
.amdhsa_kernel {name}
  .amdhsa_next_free_vgpr 512
  .amdhsa_next_free_sgpr 102
  .amdhsa_accum_offset 256
  .amdhsa_group_segment_fixed_size 0
  .amdhsa_kernarg_size 80
  .amdhsa_user_sgpr_count 2
  .amdhsa_user_sgpr_kernarg_segment_ptr 1
  .amdhsa_system_sgpr_workgroup_id_x 1
.end_amdhsa_kernel
''')

if __name__ == '__main__':
    import argparse, json
    ap = argparse.ArgumentParser()
    ap.add_argument('-o', default=None); ap.add_argument('--stop', default=None); ap.add_argument('--prof', action='store_true')
    ap.add_argument('--opt', default='{}'); ap.add_argument('-v', type=int, default=3)
    a = ap.parse_args()
    g = Gen(stop=a.stop, prof=a.prof, **json.loads(a.opt))
    txt = wrap(g.build(a.v))
    out = a.o or os.path.join(os.path.dirname(os.path.abspath(__file__)), '..', 'cdna_kernels', NAME + '.s')
    open(out, 'w').write(txt)
    if a.prof: open(out + '.stamps', 'w').write(json.dumps(g.stamps))
    print('wrote', out, len(txt), 'bytes')
```

```python
import re, subprocess, glob, math
MC = sorted(glob.glob('rocm*/llvm/bin/llvm-mc'))[0]
WIDE = ('v_mov_b32', 'v_add_f32', 'v_mul_f32', 'v_sub_f32', 'v_max_f32', 'v_exp_f32', 'v_rcp_f32', 'v_add_u32', 'v_and_b32',
        'v_lshlrev_b32', 'v_fmac_f32', 'v_or_b32', 'v_lshrrev_b32', 'v_xor_b32', 'v_min_f32', 'v_sub_u32', 'v_rsq_f32')
def is_ins(l):
    t = l.split(';')[0].strip()
    return bool(t) and not t.endswith(':') and not t.startswith('.')
def sizes(lines):
    r = subprocess.run([MC, '-arch=amdgcn', '-mcpu=gfx950', '-show-encoding'], input='\n'.join(lines) + '\n', text=True, capture_output=True)
    assert r.returncode == 0, r.stderr[:500]
    enc = [len(x.split(',')) for x in re.findall(r'encoding: \[([^\]]*)\]', r.stdout)]
    ins = [i for i, l in enumerate(lines) if is_ins(l)]
    assert len(enc) == len(ins), (len(enc), len(ins))
    return dict(zip(ins, enc))
def warm(body, stride=128, stages=((12, 1), (20, 1), (28, 1)), skip=128, upto='END', nmax=127):
    L = body.split('\n'); out = []; nd = 0; first = True; k = 0; pos = [p for p, _ in stages]
    def stage(k):
        nonlocal first
        c = []
        if first:
            c += ['s_lshr_b32 s101, s2, 3', 's_lshl2_add_u32 s101, s101, s40', f's_mul_i32 s3, s101, {stride}']; first = False
        c += [f's_cmp_ge_u32 s3, @N{k}@', f's_cbranch_scc1 WRET{k}', f's_add_u32 m0, s3, @K{k}@', 's_getpc_b64 s[100:101]', f'WPC{k}:',
              's_add_u32 s100, s100, m0', 's_addc_u32 s101, s101, 0', 's_mov_b64 exec, 0', 's_setpc_b64 s[100:101]', f'WRET{k}:', 's_mov_b64 exec, -1']
        return [x if x.endswith(':') else '    ' + x for x in c]
    w0 = False
    for l in L:
        if k < len(pos) and pos[k] == 0 and not w0 and l.strip().startswith('s_waitcnt lgkmcnt(0)'):
            out += stage(k); k += 1; w0 = True
        out.append(l)
        if re.search(r'buffer_load_dwordx4 .*s\[4:7\].* lds', l) and nd < 28:
            nd += 1
            while k < len(pos) and pos[k] == nd: out += stage(k); k += 1
    assert k == len(pos)
    L = out
    sz = sizes([re.sub(r'@[NK]\d+@', '0x12345', l) for l in L])
    last = max(i for i, l in enumerate(L) if l.startswith('WRET'))
    out = []; addr = 0; pads = []; lab = {}; nxt = None; chunk0 = 0; done = False; nn = nw = 0
    for i, l in enumerate(L):
        if l.endswith(':') and not is_ins(l):
            if l[:-1] == upto: done = True
            lab[l[:-1]] = addr
        if i == last: nxt = (addr + skip + stride - 1) // stride * stride
        if i in sz:
            if nxt is not None and not done and addr + sz[i] > nxt:
                if addr < nxt:
                    cand = [j for j in range(len(out) - 1, chunk0 - 1, -1) if out[j][1] == 4 and out[j][0].split()[0] in WIDE]
                    if cand:
                        j = cand[0]; t = out[j][0]; op = t.split()[0]
                        out[j] = (t.replace(op, op + '_e64', 1), 8); nw += 1
                    else: out.append(('    s_nop 0', 4)); nn += 1
                    addr += 4
                assert addr == nxt
                out.append((f'WPAD{len(pads)}:', 0)); out.append((f'    s_cbranch_execz @T{len(pads)}@', 4))
                pads.append(addr); addr += 4; nxt += stride; chunk0 = len(out)
            out.append((l, sz[i])); addr += sz[i]
        else: out.append((l, 0))
    N = len(pads); tot = sum(c for _, c in stages); n = min(nmax, math.ceil(N / tot))
    txt = '\n'.join(l for l, _ in out); tgt = {}; base = 0
    for k, (_, c) in enumerate(stages):
        nk = max(0, min(n, N - base)); assert nk > 0
        txt = txt.replace(f'@N{k}@', hex(nk * stride)).replace(f'@K{k}@', f'WPAD{base}-WPC{k}')
        for j in range(base, min(N, base + n * c)):
            tgt[j] = f'WPAD{j + n}' if (j + n < min(N, base + n * c)) else f'WRET{k}'
        base += n * c
    for j in range(N): txt = txt.replace(f'@T{j}@', tgt.get(j, 'WRET0'))
    print(f'warm: {N} pads (covered {len(tgt)}), n={n}, widened {nw}, nops {nn}, bytes {addr}')
    return txt
def verify(path, stride):
    cl = MC.replace('llvm-mc', 'clang'); od = MC.replace('llvm-mc', 'llvm-objdump')
    subprocess.run([cl, '-x', 'assembler', '-target', 'amdgcn-amd-amdhsa', '-mcpu=gfx950', '-c', path, '-o', 'w.o'], check=True)
    d = subprocess.run([od, '-d', 'w.o'], text=True, capture_output=True).stdout
    a = [int(m, 16) for m in re.findall(r's_cbranch_execz.*// ([0-9A-F]+):', d)]
    assert all(x % stride == 0 for x in a) and all(y - x == stride for x, y in zip(a, a[1:])), a[:20]
    g = re.findall(r's_add_u32 m0, s3, (0x[0-9a-f]+).*\n.*s_getpc.*// ([0-9A-F]+):', d)
    for kk, p in g: assert (int(kk, 16) + int(p, 16) + 4) in a, (kk, p)
    print('verify ok', len(a), 'pads', hex(a[0]), hex(a[-1]), g)
```

```python
import sys, os, struct, math
sys.path.insert(0, os.path.dirname(os.path.abspath(__file__)))
from asmlib import Prog
from sched import Sched

NAME = 'recurrent_scan__mha_block__swiglu_ffn__prompt'
def fb(x): return '0x%08x' % struct.unpack('<I', struct.pack('<f', x))[0]
LOG2E = 1.4426950408889634; LN2 = 0.6931471805599453
KVF, HF, PF, FF = 0x1000, 0x2000, 0x3000, 0x4000
KV, HB, PART, OB, PROF, WS_SZ = 0x10000, 0x410000, 0xB10000, 0x1B10000, 0x1F00000, 0x2000000
R = 40896; ASL = 6784; GS = 3712; XB = 12224; MRG = 25600
X, QKV, WO, G, U, WD, OUT, WS, MS = [f's[{b}:{b+3}]' for b in (4, 8, 12, 16, 20, 24, 28, 32, 36)]
sW, sH, sI, sKQ, sNQ, sWB, sNON, sCNT = [f's{i}' for i in range(40, 48)]
T2688, T3584 = 48, 55
sF, sDo, sWoff = 's3', 's64', 's65'
(sKVst, sKVfl, sKVpl, sKVld, sHst, sHst2, sHfl, sHpl, sHld, sPst, sPfl, sPpl, sPld, sOst, sOfl, sOpl, sOld, sOld2,
 sR2) = [f's{i}' for i in range(66, 85)]
sT0, sT1, sT2, sT3 = 's85', 's86', 's87', 's88'
sR0, sC0, sC1, sR1 = 's89', 's90', 's91', 's92'
HIM, L28 = 's[94:95]', 's[96:97]'
SPIN_MAX = 200000
def vr(b, n=4): return f'v[{b}:{b+n-1}]'
def ar(b, n=4): return f'a[{b}:{b+n-1}]'
AQ, AK, AV, AU, AG = 128, 144, 160, 176, 128
MF = 'v_mfma_f32_32x32x16_bf16'
GJ = (7, 6, 13, 8)
AS = (0, 1, 2, 3, 4, 5, 0); US = (2, 3, 4, 5, 6, 7, 8); DS = (9, 10, 1, 2, 3, 4, 5)
GRES = [list(range(168, 176)) + list(range(136, 144)), list(range(160, 168)) + list(range(240, 248)),
        list(range(144, 160)), list(range(128, 136))]
NKV0 = 4
def kvr(kt, pc): return ar((32, 48, 64, 80, 192, 208, 224)[kt % 7] + 4 * pc)
def plane(base, srd, so):
    return [f's_add_u32 m0, {sWB}, {base}'] + [f'buffer_load_dwordx4 v{GJ[j]}, {srd}, {so} offen offset:{896 * j} lds' for j in range(4)]
def a_dma(c):
    b = ASL * AS[c]; so = f's{T2688 + c}'
    return [f's_add_u32 m0, {sWB}, {b}', f'buffer_load_dwordx4 v11, {QKV}, {so} offen lds',
            f'buffer_load_dwordx4 v12, {QKV}, {so} offen offset:1024 lds',
            f's_add_u32 m0, {sWB}, {b + 2048 - 896}', f'buffer_load_dwordx4 v11, {QKV}, {so} offen offset:896 lds'] + plane(b + 3072, G, f's{T3584 + c}')
def u_dma(c): return plane(GS * US[c], U, f's{T3584 + c}')
def d_dma(c): return plane(GS * DS[c], WD, sDo) + ([f's_add_u32 {sDo}, {sDo}, 57344'] if c < 6 else [])
def tr_pair(dst, kind, addr, bases, second):
    for b, reg in bases:
        if 0 <= addr - b and addr - b + second <= 65535:
            return [f'ds_read_b64_tr_b16 {kind}[{dst}:{dst+1}], v{reg} offset:{addr - b}',
                    f'ds_read_b64_tr_b16 {kind}[{dst+2}:{dst+3}], v{reg} offset:{addr - b + second}']
    raise ValueError(addr)
NAT = ((0, 2), (57344, 3), (114688, 4))

class Gen:
    def __init__(s, stop=None, prof=False, **opt):
        s.P = Prog(); s.S = Sched(s.P); s.stop = stop; s.prof = prof; s.tail = []; s.nst = 0; s.opt = opt
        s.stamps = []
    def stamp(s, name):
        cal = s.opt.get('cal')
        if cal and cal[1] == name: s.P('s_memrealtime s[100:101]\ns_waitcnt lgkmcnt(0)\ns_mov_b32 s93, s100')
        if not s.prof: return
        s.P(f's_memtime s[100:101]\ns_waitcnt lgkmcnt(0)\nv_writelane_b32 v0, s100, {s.nst}')
        s.stamps.append(name); s.nst += 1
    def check(s, name, vreg, voff, sbase):
        s.tail.append(f'''SPIN_{name}:
            s_mov_b32 {sCNT}, 0
            SPINL_{name}:
            buffer_load_dword v{vreg}, v{voff}, {WS}, {sbase} offen sc1
            s_waitcnt vmcnt(0)
            v_cmp_ne_u32 vcc, {sNON}, v{vreg}
            s_cbranch_vccz RET_{name}
            s_add_u32 {sCNT}, {sCNT}, 1
            s_cmp_lt_u32 {sCNT}, {SPIN_MAX}
            s_cbranch_scc1 SPINL_{name}
            s_branch RET_{name}''')
        return f'v_cmp_ne_u32 vcc, {sNON}, v{vreg}\ns_cbranch_vccnz SPIN_{name}\nRET_{name}:'
    def push_dma(s, lines, tag, delay=0, prio=2, pace=0):
        for l in lines:
            if pace:
                s.nxt = max(getattr(s, 'nxt', 0), s.S.now + delay)
                s.S.push(l, delay=s.nxt - s.S.now - (1 if l[0] == 's' else 0), tag=tag, key=tag, prio=prio)
                if l[0] == 'b': s.nxt += pace
            else: s.S.push(l, delay=delay, tag=tag, key=tag, prio=prio)

    def prologue(s):
        P = s.P
        P('s_cmp_ge_u32 s2, 0x100\ns_cbranch_scc1 END')
        if s.prof: P('s_memtime s[98:99]')
        if s.opt.get('cal'): P('s_memrealtime s[98:99]')
        for r, o in ((4, 0), (32, 72), (8, 8), (16, 32), (20, 40), (24, 48), (12, 16), (28, 56)):
            P(f's_load_dwordx2 s[{r}:{r+1}], s[0:1], {o}')
        P(f'''v_lshrrev_b32 v1, 6, v0
            v_and_b32 v0, 63, v0
            s_and_b32 {sKQ}, s2, 3
            v_readfirstlane_b32 {sW}, v1
            s_bfe_u32 {sNQ}, s2, 0x20003
            s_lshr_b32 {sI}, s2, 5
            s_lshl1_add_u32 {sT0}, {sNQ}, {sI}
            s_mul_i32 s{T3584}, {sT0}, {128 * s.opt.get('rot', 1)}
            s_sub_u32 {sT0}, s{T3584}, 896
            s_cselect_b32 s{T3584}, s{T3584}, {sT0}
            s_and_b32 {sT0}, s2, 4
            s_lshl1_add_u32 {sI}, {sT0}, {sI}
            s_lshl2_add_u32 {sT1}, {sI}, {sW}
            s_mul_i32 {sWB}, {sW}, {R}
            s_mul_i32 {sT2}, {sT1}, {32 * 896}
            v_lshrrev_b32 v128, 3, v0
            v_and_b32 v129, 7, v0
            v_lshrrev_b32 v130, 4, v0
            v_xor_b32 v129, v129, v130
            v_mul_u32_u24 v128, 896, v128
            v_lshl_add_u32 v128, v129, 4, v128
            v_add_u32 v248, {sT2}, v128
            v_xor_b32 v249, 64, v248
            v_add_u32 v249, 6144, v249
            v_add_u32 v246, 12288, v248
            v_add_u32 v247, 12288, v249
            s_mov_b32 s6, 1835008
            s_mov_b32 s7, 0x20000
            s_mov_b32 s34, {WS_SZ}
            s_mov_b32 s35, 0x20000''')
        sal = []
        for b, n in ((8, 1204224), (16, 1605632), (20, 1605632), (24, 401408), (12, 401408), (28, 1835008), (36, 1605632)):
            sal += [f's_mov_b32 s{b+2}, {n}', f's_mov_b32 s{b+3}, 0x20000']
        P('s_waitcnt lgkmcnt(0)')
        if s.prof: P('s_memtime s[90:91]\ns_memrealtime s[92:93]\ns_waitcnt lgkmcnt(0)\nv_mov_b32 v240, s90\nv_mov_b32 v241, s92')
        for c in range(7):
            n = T3584 + c + 1
            P(f's_add_u32 m0, {sWB}, {XB + 4096 * c}')
            P(f's_add_u32 s{n}, s{n-1}, 128\ns_cmp_eq_u32 s{n}, 896\ns_cselect_b32 s{n}, 0, s{n}' if c < 6 else sal.pop())
            for rg in range(4):
                P(f'buffer_load_dwordx4 v{(248, 249, 246, 247)[rg]}, {X}, s{T3584 + c} offen offset:{1024 * rg} lds', tag=f'x{c}')
        for l in sal: P(l)
        if s.prof: P('s_memtime s[90:91]\ns_waitcnt lgkmcnt(0)\nv_mov_b32 v242, s90')
        P('buffer_load_dword v131, off, %s, 0 sc1' % WS, tag='non')
        for c in range(7): P(f's_mul_i32 s{T2688 + c}, s{T3584 + c}, 1344\ns_mul_i32 s{T3584 + c}, s{T3584 + c}, 1792')
        P(f'''s_lshr_b32 {sT0}, {sNQ}, 1
            s_lshr_b32 {sT2}, {sKQ}, 1
            s_xor_b32 {sT2}, {sT2}, {sT0}
            s_xor_b32 {sT2}, {sT2}, {sNQ}
            s_and_b32 {sT2}, {sT2}, 1
            s_lshl1_add_u32 {sT2}, {sT0}, {sT2}
            s_lshl2_add_u32 {sH}, {sKQ}, {sT2}
            s_lshl2_add_u32 {sF}, {sKQ}, {sNQ}''')
        s.addr_a()
        for l in a_dma(0): P(l, tag='A0')
        P(f'''s_mul_i32 {sT0}, {sKQ}, 401408
            s_add_u32 s24, s24, {sT0}
            s_addc_u32 s25, s25, 0
            s_lshl_b32 {sT0}, {sH}, 6
            s_add_u32 {sT2}, {sT0}, {sT1}
            s_lshl_b32 {sKVst}, {sT2}, 12
            s_add_u32 {sKVst}, {sKVst}, {KV}
            s_lshl2_add_u32 {sKVfl}, {sT2}, {KVF}
            s_lshl4_add_u32 {sT2}, {sW}, {sT0}
            s_lshl2_add_u32 {sKVpl}, {sT2}, {KVF}
            s_lshl_b32 {sKVld}, {sT2}, 12
            s_add_u32 {sKVld}, {sKVld}, {KV}
            s_lshl4_add_u32 {sT2}, {sT1}, {sH}
            s_lshl2_add_u32 {sOfl}, {sT2}, {FF}
            s_lshl_b32 {sOst}, {sT2}, 11
            s_add_u32 {sOst}, {sOst}, {OB}
            s_lshl4_add_u32 {sT2}, {sT1}, {sF}
            s_mul_i32 {sHst}, {sT2}, 7168
            s_add_u32 {sHst}, {sHst}, {HB}
            s_add_u32 {sHst2}, {sHst}, 4096
            s_lshl2_add_u32 {sHfl}, {sT2}, {HF}
            s_sub_u32 {sT2}, {sT2}, {sNQ}
            s_lshl2_add_u32 {sHpl}, {sT2}, {HF}
            s_mul_i32 {sHld}, {sT2}, 7168
            s_add_u32 {sHld}, {sHld}, {HB}
            s_lshl2_add_u32 {sT2}, {sT1}, {sNQ}
            s_lshl2_add_u32 {sT3}, {sT2}, {sKQ}
            s_lshl2_add_u32 {sPfl}, {sT3}, {PF}
            s_lshl4_add_u32 {sT3}, {sT2}, {sKQ}
            s_lshl_b32 {sPst}, {sT3}, 12
            s_add_u32 {sPst}, {sPst}, {PART}
            s_lshl2_add_u32 {sT0}, {sI}, {sKQ}
            s_lshl2_add_u32 {sT2}, {sT0}, {sNQ}
            s_lshl4_add_u32 {sPpl}, {sT2}, {PF}
            s_lshl2_add_u32 {sT2}, {sT2}, {sW}
            s_lshl_b32 {sPld}, {sT2}, 14
            s_add_u32 {sPld}, {sPld}, {PART}
            s_lshl2_add_u32 {sT2}, {sT0}, {sW}
            s_lshl4_add_u32 {sOpl}, {sT2}, {FF}
            s_lshl_b32 {sOld}, {sT2}, 13
            s_add_u32 {sOld}, {sOld}, {OB}
            s_add_u32 {sOld2}, {sOld}, 4096
            s_add_u32 {sR0}, {sW}, 1
            s_and_b32 {sR0}, {sR0}, 3
            s_mul_i32 {sR0}, {sR0}, {R}
            s_xor_b32 {sR1}, {sW}, 2
            s_mul_i32 {sR1}, {sR1}, {R}
            s_add_u32 {sR2}, {sW}, 3
            s_and_b32 {sR2}, {sR2}, 3
            s_mul_i32 {sR2}, {sR2}, {R}
            s_mov_b32 {sDo}, 0
            s_mov_b32 {sWoff}, 0
            s_mov_b32 s94, 0
            s_mov_b32 s95, -1
            s_mov_b32 s96, 0x10000000
            s_mov_b32 s97, 0x10000000''')
        P(f'''v_lshrrev_b32 v128, 5, v0
            v_and_b32 v134, 31, v0
            v_lshrrev_b32 v135, 3, v134
            v_lshlrev_b32 v135, 10, v135
            v_and_b32 v136, 7, v0
            v_lshl_add_u32 v135, v136, 7, v135
            v_bfe_u32 v136, v0, 1, 3
            v_xor_b32 v136, v136, v128
            s_add_u32 {sT2}, {sWB}, {XB}
            s_movk_i32 {sT3}, 0x60
            v_lshl_add_u32 v135, v136, 4, v135
            v_add_u32 v250, {sT2}, v135
            v_xad_u32 v251, v135, 32, {sT2}
            v_xad_u32 v252, v135, 64, {sT2}
            v_xor_b32 v253, {sT3}, v135
            v_add_u32 v253, {sT2}, v253
            v_bfe_u32 v129, v0, 2, 2
            v_mul_u32_u24 v5, {R}, v129
            v_lshl_add_u32 v129, v128, 3, v129
            v_bfe_u32 v130, v0, 4, 1
            v_lshlrev_b32 v133, 3, v132
            v_lshl_add_u32 v133, v130, 5, v133
            v_lshl_add_u32 v2, v129, 6, v133
            v_add_u32 v3, 57344, v2
            v_add_u32 v4, 114688, v2
            v_add_u32 v5, v5, v133
            v_mul_u32_u24 v129, 224, v128
            v_add_u32 v5, v5, v129
            v_accvgpr_write_b32 a253, v5
            v_add_u32 v5, v5, v129
            s_mul_i32 {sT2}, {sW}, 896
            s_mul_i32 {sT3}, {sNQ}, 224
            s_add_u32 {sT2}, {sT2}, {sT3}
            v_mul_u32_u24 v137, 3360, v137
            v_add3_u32 v137, v137, v1, {sT2}
            v_accvgpr_write_b32 a252, v137
            s_lshl2_add_u32 {sT2}, {sI}, {sKQ}
            s_mul_i32 {sT2}, {sT2}, {32 * 896}
            s_add_u32 {sT2}, {sT2}, {sT3}
            s_mul_i32 {sT3}, {sW}, 56
            s_add_u32 {sT2}, {sT2}, {sT3}
            v_mul_u32_u24 v134, 896, v134
            v_lshlrev_b32 v135, 3, v128
            v_add3_u32 v134, v134, v135, {sT2}
            v_lshl_or_b32 v135, v128, 31, v134
            v_accvgpr_write_b32 a254, v134
            v_accvgpr_write_b32 a255, v135
            v_and_b32 v14, 15, v0
            v_lshlrev_b32 v14, 2, v14
            v_mov_b32 v15, 0x3f803f80
            v_mov_b32 v254, 0
            v_mov_b32 v255, 0
            s_mov_b32 {sC0}, {fb(LN2 / math.sqrt(28.0))}
            s_mov_b32 {sC1}, {fb(LOG2E)}''')
        if s.opt.get('tg', 1):
            P(f'''s_lshr_b32 {sT2}, s2, 3
            s_lshl2_add_u32 s63, {sT2}, {sW}
            s_mul_i32 s63, s63, {25 * 128}
            s_lshr_b32 {sT3}, {sW}, 1
            s_lshl1_add_u32 {sT2}, {sT2}, {sT3}
            s_mul_i32 {sT3}, {sT2}, {7 * 3584}
            s_mul_i32 s62, {sKQ}, 896
            s_add_u32 {sT3}, {sT3}, s62
            s_mul_i32 {sT2}, {sT2}, {49 * 128}
            s_bitcmp1_b32 {sW}, 0
            s_cselect_b32 s36, s20, s24
            s_cselect_b32 s37, s21, s25
            s_cselect_b32 s38, s22, s26
            s_cselect_b32 {sT2}, {sT3}, {sT2}
            s_cselect_b32 {sT3}, {3584 - 896}, 0
            v_mul_u32_u24 v134, 37, v0
            v_lshrrev_b32 v134, 8, v134
            v_mul_u32_u24 v134, {sT3}, v134
            v_lshl_add_u32 v134, v0, 7, v134
            v_cmp_gt_u32 vcc, 49, v0
            v_add_u32 v134, {sT2}, v134
            v_bfrev_b32 v136, 1
            v_cndmask_b32 v232, v136, v134, vcc
            v_cmp_gt_u32 vcc, 25, v0
            v_lshl_add_u32 v134, v0, 7, s63
            s_nop 0
            v_cndmask_b32 v233, v136, v134, vcc''')
        if s.prof:
            P('v_mov_b32 v0, 0\nv_writelane_b32 v0, s98, 0\nv_readfirstlane_b32 s98, v240\nv_readfirstlane_b32 s99, v241\nv_readfirstlane_b32 s100, v242')
            P('v_writelane_b32 v0, s98, 1\nv_writelane_b32 v0, s99, 63\nv_writelane_b32 v0, s100, 2')
            s.stamps += ['t0', 'karg', 'xdma']; s.nst = 3
        s.stamp('xissued')

    def addr_a(s):
        s.P(f'''v_lshlrev_b32 v1, 4, v0
            v_and_b32 v132, 3, v0
            v_lshrrev_b32 v134, 2, v0
            s_mul_i32 {sT2}, {sW}, {16 * 2688}
            s_mul_i32 {sT3}, {sH}, 56
            s_add_u32 {sT2}, {sT2}, {sT3}
            v_lshlrev_b32 v135, 4, v132
            v_mul_u32_u24 v11, 2688, v134
            v_add3_u32 v11, v11, v135, {sT2}
            v_add_u32 v12, 768, v11
            s_mul_i32 {sT2}, {sW}, 3584
            s_mul_i32 {sT3}, {sF}, 224
            s_add_u32 {sT2}, {sT2}, {sT3}
            v_mul_u32_u24 v137, 37, v0
            v_lshrrev_b32 v137, 9, v137
            v_mul_u32_u24 v7, 14112, v137
            v_add3_u32 v7, v7, v1, {sT2}
            v_add_u32 v6, 56448, v7
            v_add_u32 v13, {2 * 56448}, v7
            v_add_u32 v8, {3 * 56448}, v7''')
    def spare(s, j): return AU + j
    def xphase(s):
        P = s.P; tg = s.opt.get('tg', 1)
        def valu(c):
            for r in range(16):
                x = 16 + 16 * c + r; j = 16 * c + r
                P(f'v_dot2c_f32_bf16 v254, v{x}, v15')
                if j < 56: P(f'v_lshlrev_b32 v{s.spare(j)}, 16, v{x}')
                P(f'v_dot2c_f32_bf16 v255, v{x}, v{x}')
                if j < 56: P(f'v_and_b32 v{x}, 0xffff0000, v{x}')
        for c in range(7):
            P.wait_tag(f'x{c}')
            if s.opt.get('xst'): s.stamp(f'x{c}')
            for q in range(4): P(f'ds_read_b128 {vr(16 + 16 * c + 4 * q)}, v{250 + q} offset:{4096 * c}')
            if c: valu(c - 1)
            for k, cc in enumerate(s.opt.get('xa', [6]), 1):
                if cc != c: continue
                assert c >= (0, 0, 1, 3, 5, 6)[k]
                P.need(vr(16 + 16 * c, 16))
                for l in a_dma(k): P(l, tag=f'A{k}')
        s.stamp('xlanded')
        valu(6)
        P(f'''v_readfirstlane_b32 {sNON}, v131
            v_permlane32_swap_b32 v254, v255
            s_mul_i32 {sNON}, {sNON}, 0x9e3779b1
            s_add_u32 {sNON}, {sNON}, 0x7f4a7c15''')
        P.wait_tag('A0')
        if s.opt.get('xst'): s.stamp('w1')
        P('s_barrier')

    def reads1(s, n):
        m = s.ml[n]; rg = 4 * (n % 6); t = m['t']
        if t is None: return []
        c, ks = m['s'] >> 2, m['s'] & 3
        if t in 'QKV': return tr_pair(rg, 'a', R * ks + ASL * AS[c] + 1024 * 'QVK'.index(t), NAT, 256)
        base = ASL * AS[c] + 3072 if t[0] == 'G' else GS * US[c]
        return tr_pair(rg, 'a', base + 896 * ks + 64 * int(t[1]), ((0, 5),), 224)
    def mtext(s, n):
        m = s.ml[n]
        if m['t'] is None: return m['text']
        acc = m['acc']; w = ar(4 * (n % 6)); x = vr(16 + 4 * m['s'])
        a, b = (x, w) if m['t'] == 'V' else (w, x)
        return f'{MF} {acc}, {a}, {b}, {0 if m["s"] == 0 else acc}'
    def norm(s, ks):
        S = s.S
        for r in range(4):
            j = 4 * ks + r; x = 16 + j
            if j < 56:
                sp = s.spare(j)
                S.push(f'v_fma_f32 v{sp}, v{sp}, v9, v10\nv_fma_f32 v{x}, v{x}, v9, v10\nv_cvt_pk_bf16_f32 v{x}, v{sp}, v{x}', key='norm')
            else:
                t = 248 + 2 * (j & 1)
                S.push(f'''v_lshlrev_b32 v{t}, 16, v{x}
                    v_and_b32 v{t+1}, 0xffff0000, v{x}
                    v_fma_f32 v{t}, v{t}, v9, v10
                    v_fma_f32 v{t+1}, v{t+1}, v9, v10
                    v_cvt_pk_bf16_f32 v{x}, v{t}, v{t+1}''', key='norm')
    def gate(s, tl, delay):
        res = GRES[tl]
        for r in range(0, len(res), 2):
            t = 248 + (r & 2); g, g1 = res[r], res[r + 1]; a = AG + 16 * tl + r
            s.S.push(f'''v_accvgpr_read_b32 v{g}, a{a}
                v_accvgpr_read_b32 v{g1}, a{a+1}
                v_exp_f32 v{t}, -v{g}
                v_exp_f32 v{t+1}, -v{g1}
                v_fma_f32 v{t}, v{t}, {sC1}, {sC1}
                v_fma_f32 v{t+1}, v{t+1}, {sC1}, {sC1}
                v_rcp_f32 v{t}, v{t}
                v_rcp_f32 v{t+1}, v{t+1}
                v_mul_f32 v{g}, v{g}, v{t}
                v_mul_f32 v{g1}, v{g1}, v{t+1}''', delay=delay, key='gate')
    def hmul(s, tl, delay):
        S = s.S; res = GRES[tl]; u = AU + 16 * tl
        for r in range(0, len(res), 2):
            S.push(f'''v_mul_f32 v{u+r}, v{res[r]}, v{u+r}
                v_mul_f32 v{u+r+1}, v{res[r+1]}, v{u+r+1}
                v_cvt_pk_bf16_f32 v{u + r // 2}, v{u+r}, v{u+r+1}''', delay=delay, key='hmul', prio=1)
            if r % 8 == 6:
                k = 2 * tl + r // 8
                S.push(f'buffer_store_dwordx4 {vr(u + 4 * (r // 8))}, v1, {WS}, {sHst if k < 4 else sHst2} offen offset:{1024 * (k & 3)} sc1',
                       delay=delay, tag='hst', key='hst', prio=2)
    def barrier(s, keys, tags, lgkm0=False):
        s.S.force_key(*keys); s.P.wait_tag(*tags, lgkm0=lgkm0); s.P('s_barrier')

    def phase1(s):
        P, S, o = s.P, s.S, s.opt
        ml = s.ml = []
        acc = dict(Q=vr(AQ, 16), K=vr(AK, 16), V=vr(AV, 16))
        for t in range(4): acc[f'G{t}'] = ar(AG + 16 * t, 16); acc[f'U{t}'] = vr(AU + 16 * t, 16)
        def add(t, ks): ml.append(dict(t=t, s=ks, acc=acc[t]))
        first = {}
        for nm, tiles, last in (('A', ['Q', 'K', 'V', 'G0', 'G1', 'G2', 'G3'], ['K', 'V', 'Q', 'G0', 'G1', 'G2', 'G3']),
                                ('U', ['U0', 'U1', 'U2', 'U3'], ['U0', 'U1', 'U2', 'U3'])):
            for c in range(7):
                first[nm, c] = len(ml)
                if c < 6:
                    for ks in range(4 * c, 4 * c + 4):
                        for t in tiles: add(t, ks)
                        if nm == 'U' and ks == o.get('sown', 0):
                            ml.append(dict(t=None, text=f'{MF} v[144:159], v[240:243], v[128:131], 0'))
                            ml.append(dict(t=None, text=f'{MF} v[144:159], v[244:247], v[132:135], v[144:159]', sown=1))
                else:
                    for t in last:
                        for ks in range(24, 28): add(t, ks)
        ix = {(m['t'], m['s']): n for n, m in enumerate(ml) if m['t']}
        N = len(ml)
        P.mark('stats')
        for n in range(4):
            for l in s.reads1(n): P(l)
        P(f'''v_add_f32 v254, v254, v255
            v_mov_b32 v255, v254
            s_mov_b32 {sT2}, {fb(1 / 448)}
            s_mov_b32 {sT3}, {fb(1e-5)}
            v_permlane32_swap_b32 v254, v255
            v_mul_f32 v254, {sT2}, v254
            v_mul_f32 v255, {sT2}, v255
            v_fma_f32 v255, -v254, v254, v255
            v_max_f32 v255, 0, v255
            v_add_f32 v255, {sT3}, v255
            v_rsq_f32 v255, v255
            s_nop 0
            v_mul_f32 v9, {fb(LOG2E)}, v255
            v_mul_f32 v10, v9, v254
            v_sub_f32 v10, 0, v10''')
        for ks in range(28): s.norm(ks)
        S.force_for(s.mtext(0))
        s.stamp('p1start')
        P.mark('pass1')
        pre = {}
        post = {}
        def at(d, n, f): d.setdefault(n, []).append(f)
        pace = o.get('pace', 3); bars = o.get('bars', [1, 2, 3, 4, 5, 6]); tg = o.get('tg', 1)
        def touches(k):
            if tg and k == o.get('t1', 6): s.push_dma([f'buffer_load_dword a240, v232, {MS}, 0 offen'], 'tch', pace=pace)
            if tg and k == o.get('t2', 6): s.push_dma([f'buffer_load_dword a242, v233, {WO}, 0 offen'], 'tch', pace=pace)
        for k in range(1 + len(o.get('xa', [6])), 6):
            s.push_dma(a_dma(k), f'A{k}', pace=pace); touches(k)
        def bar(c):
            nx = min([b for b in bars if b > c] + [7]); tg_ = [f'A{k}' for k in range(c, nx)]
            s.barrier(tg_, tg_, c in (1, 3))
            if c == min(bars):
                s.push_dma(a_dma(6), 'A6', pace=pace); touches(6)
                S.push(f'v_min_u32 v11, 1, v1\nv_lshlrev_b32 v11, 31, v11\nv_mov_b32 v12, {sNON}', key='misc', prio=-1)
                S.push('\n'.join(f'v_accvgpr_write_b32 a{244 + r}, -1' for r in range(4)), key='misc', prio=-1)
            if c == min(b for b in bars if b >= 3):
                for u in range(3): s.push_dma(u_dma(u), f'U{u}', pace=pace)
        assert bars[0] == 1
        for c in bars: at(pre, first['A', c] - 4, lambda c=c: bar(c))
        def epi_k():
            for a in range(2): S.push(f'buffer_store_dwordx4 a[244:247], v1, {WS}, {sOst} offen offset:{1024 * a} sc1', key='kv', prio=2)
            for r in range(8): S.push(f'v_cvt_pk_bf16_f32 v{240+r}, v{AK+2*r}, v{AK+2*r+1}', key='k', delay=2, prio=1)
            S.push(f'v_cndmask_b32 v246, v246, v15, {HIM}\nv_cndmask_b32 v247, v247, 0, {HIM}', key='k', delay=2, prio=1)
            for a in range(2):
                S.push(f'buffer_store_dwordx4 {vr(240+4*a)}, v1, {WS}, {sKVst} offen offset:{1024*a} sc1', tag='kv', key='kv', prio=2)
        at(post, ix['K', 27], epi_k)
        def epi_v():
            for r in range(8):
                S.push(f'v_cvt_pk_bf16_f32 v{AV+r}, v{AV+2*r}, v{AV+2*r+1}\nv_cndmask_b32 v{AV+r}, v{AV+r}, v15, {L28}', key='v', delay=2, prio=1)
            for a in range(2):
                S.push(f'buffer_store_dwordx4 {vr(AV+4*a)}, v1, {WS}, {sKVst} offen offset:{2048+1024*a} sc1', tag='kv', key='kv', prio=2)
            for c in range(3, 7):
                s.push_dma(u_dma(c), f'U{c}')
            S.push('v_accvgpr_read_b32 v7, a252\nv_add_u32 v6, 13440, v7\nv_add_u32 v13, 26880, v7\nv_add_u32 v8, 40320, v7', key='dadr', prio=1)
        at(post, ix['V', 27], epi_v)
        def epi_q():
            for r in range(8):
                S.push(f'''v_mul_f32 v{AQ+2*r}, {sC0}, v{AQ+2*r}
                    v_mul_f32 v{AQ+2*r+1}, {sC0}, v{AQ+2*r+1}
                    v_cvt_pk_bf16_f32 v{AQ+r}, v{AQ+2*r}, v{AQ+2*r+1}''', key='q', delay=2, prio=1)
            S.push(f'v_cndmask_b32 v134, v134, 0, {HIM}\nv_cndmask_b32 v135, v135, 0, {HIM}', key='q', delay=2, prio=1)
            S.push(f'''v_add_u32 v10, {sWB}, v1
                v_add_u32 v2, {sR0}, v1
                v_add_u32 v3, {sR1}, v1
                v_add_u32 v4, {sR2}, v1
                v_and_b32 v9, 12, v14''', key='misc', prio=0)
        at(post, ix['Q', 27], epi_q)
        for t in range(2): at(post, ix[f'G{t}', 27], lambda t=t: s.gate(t, 2) if t == 0 else None)
        def b5():
            s.barrier(('U0', 'U1', 'U2'), ('U0', 'U1', 'U2'), True)
            for c in range(3):
                if o.get('dst', [-1, -1, 0])[c] < 0: s.push_dma(d_dma(c), f'D{c}', delay=o.get('ddel', 0), pace=o.get('dpace', 0))
        at(pre, first['U', 0] - 4, b5)
        def sown():
            S.push('''v_max3_f32 v144, v144, v145, v146
                v_max3_f32 v147, v147, v148, v149
                v_max3_f32 v150, v150, v151, v152
                v_max3_f32 v153, v153, v154, v155
                v_max3_f32 v156, v156, v157, v158
                v_max3_f32 v144, v144, v147, v150
                v_max3_f32 v153, v153, v156, v159
                v_max_f32 v144, v144, v153
                v_mov_b32 v145, v144''', delay=2, key='qw', prio=1)
            S.push('v_permlane32_swap_b32 v144, v145', delay=5, key='qw', prio=1)
            S.push(f'''v_max_f32 v144, v144, v145
                v_cvt_pk_bf16_f32 v144, -v144, 0
                v_cndmask_b32 v134, v134, v144, {HIM}''', delay=5, key='qw', prio=1)
            S.push('ds_write_b128 v10, v[128:131]\nds_write_b128 v10, v[132:135] offset:1024', tag='qw', key='qw', prio=2)
            for t in range(1, 4): s.gate(t, 0)
        at(post, [n for n, m in enumerate(ml) if m.get('sown')][0], sown)
        def kvflag():
            S.force_key('kv', 'misc'); P.wait_tag('kv'); P(f'buffer_store_dword v12, v11, {WS}, {sKVfl} offen sc1')
        at(pre, first['U', 0] + o.get('kvflag', 24), kvflag)
        def b6():
            s.barrier(('U3', 'U4', 'qw'), ('U3', 'U4', 'qw'))
            for u in range(4):
                S.push(f'ds_read_b128 {ar(96 + 8 * u)}, v{(2, 3, 4, 10)[u]}\nds_read_b128 {ar(100 + 8 * u)}, v{(2, 3, 4, 10)[u]} offset:1024', key='qr', prio=2)
        at(pre, first['U', 3] - 4, b6)
        at(post, first['U', 3] + o.get('kvpoll', 8), lambda: S.push(f'buffer_load_dword v252, v14, {WS}, {sKVpl} offen sc1', key='kvp', prio=2))
        def b7():
            S.force_key('kvp'); P(s.check('KV', 252, 14, sKVpl))
            s.barrier(('U5', 'U6'), ('U5', 'U6'))
            for kt in range(NKV0):
                for pc in range(4):
                    S.push(f'buffer_load_dwordx4 {kvr(kt, pc)}, v1, {WS}, {sKVld} offen offset:{1024 * pc} sc1', key='kvl', prio=2)
                S.push(f's_add_u32 {sKVld}, {sKVld}, 4096', key='kvl', prio=2)
        at(pre, first['U', 5] - 4, b7)
        for t in range(3): at(post, ix[f'U{t}', 27], lambda t=t: s.hmul(t, 2))
        S.vD = ix['U3', 27] - 4
        marks = {first['A', 1]: 'A1', first['A', 3]: 'A3', first['A', 5]: 'A5', first['A', 6]: 'A6', first['U', 0]: 'U0', first['U', 3]: 'U3', first['U', 5]: 'U5'}
        for n in range(N):
            if n in marks: P.mark(marks[n]); s.stamp(marks[n])
            S.force_for(s.mtext(n))
            P(s.mtext(n))
            if n + 1 < N and ml[n + 1]['t']: P.need(ar(4 * ((n + 1) % 6)))
            for f in pre.get(n, []): f()
            if n + 4 < N:
                for l in s.reads1(n + 4): P(l)
            if n + 5 == N: S.push('v_accvgpr_read_b32 v5, a253', key='misc', prio=1)
            for f in post.get(n, []): f()
            bud = o.get('bud', 16) + (8 if (n + 4 >= N or ml[n + 4]['t'] is None) else 0)
            used = S.fill(bud, ('vm', 'ds', 'fence'), maxn=o.get('maxmem', 1))
            if n + 2 < N: used += S.force_for(s.mtext(n + 2))
            used += S.fill(bud - used, ('valu', 'salu'))
            S.now += 1

    def finish(s):
        P = s.P
        s.S.flush()
        if s.prof:
            s.stamp('end')
            P('s_memrealtime s[100:101]\ns_waitcnt lgkmcnt(0)\nv_writelane_b32 v0, s100, 62')
            P(f'''s_lshl2_add_u32 {sT0}, s2, {sW}
                s_lshl_b32 {sT0}, {sT0}, 8
                s_add_u32 {sT0}, {sT0}, {PROF}
                v_lshrrev_b32 v1, 2, v1
                buffer_store_dword v0, v1, {WS}, {sT0} offen''')
        cal = s.opt.get('cal')
        if cal:
            P('s_waitcnt vmcnt(0)')
            if cal[1]: P(f's_sub_u32 s93, s93, s98\ns_mul_i32 s93, s93, {cal[2]}\ns_add_u32 s93, s93, {cal[0]}')
            else: P(f's_mov_b32 s93, {cal[0]}')
            P('CALL:\ns_memrealtime s[100:101]\ns_waitcnt lgkmcnt(0)\ns_sub_u32 s100, s100, s98\ns_cmp_lt_u32 s100, s93\ns_cbranch_scc1 CALL')
        P('s_waitcnt vmcnt(0)\nEND:\ns_endpgm')
        for t in s.tail:
            P.reset(); P(t)

    def build(s, verbose=0):
        s.prologue(); s.P.mark('xphase'); s.xphase(); s.phase1()
        if s.stop == 'p1':
            s.hmul(3, 0)
        else:
            import gen2
            gen2.phase2(s)
        s.finish()
        s.P.pass_waits(); s.P.pass_nops(verbose)
        if verbose: s.P.estimate()
        return s.P.text()

def wrap(body, name=NAME + '_kernel'):
    ref = open(os.path.join(os.path.dirname(os.path.abspath(__file__)), '..', 'cdna_kernels', NAME + '.s.ref')).read()
    head = ref[:ref.index('; @launch')]
    return (head + '; @launch grid=(256,1,1) block=(256,1,1) lds=163840\n.amdgcn_target "amdgcn-amd-amdhsa--gfx950"\n.text\n'
            f'.globl {name}\n.p2align 8\n.type {name},@function\n{name}:\n' + body +
            f'''.section .rodata,"a"
.p2align 6
.amdhsa_kernel {name}
  .amdhsa_next_free_vgpr 512
  .amdhsa_next_free_sgpr 102
  .amdhsa_accum_offset 256
  .amdhsa_group_segment_fixed_size 0
  .amdhsa_kernarg_size 80
  .amdhsa_user_sgpr_count 2
  .amdhsa_user_sgpr_kernarg_segment_ptr 1
  .amdhsa_system_sgpr_workgroup_id_x 1
.end_amdhsa_kernel
''')

if __name__ == '__main__':
    import argparse, json
    ap = argparse.ArgumentParser()
    ap.add_argument('-o', default=None); ap.add_argument('--stop', default=None); ap.add_argument('--prof', action='store_true')
    ap.add_argument('--opt', default='{}'); ap.add_argument('-v', type=int, default=3)
    a = ap.parse_args()
    opt = dict(dst=[0,3,6,9,12,15,18], dlen=3, silusplit=0, owait=0); opt.update(json.loads(a.opt))
    wm = opt.pop('warm', None)
    g = Gen(stop=a.stop, prof=a.prof, **opt)
    body = g.build(a.v)
    if wm is not None:
        import warm
        body = warm.warm(body, **wm)
    txt = wrap(body)
    out = a.o or os.path.join(os.path.dirname(os.path.abspath(__file__)), '..', 'cdna_kernels', NAME + '.s')
    open(out, 'w').write(txt)
    if wm is not None: warm.verify(out, wm.get('stride', 128))
    if a.prof: open(out + '.stamps', 'w').write(json.dumps(g.stamps))
    print('wrote', out, len(txt), 'bytes')
```
